```python
import torch

def _softmax(x, axis=-1):
    return torch.softmax(x, dim=axis)

def _gelu(x):
    return torch.nn.functional.gelu(x, approximate='tanh')

def _silu(x):
    return torch.nn.functional.silu(x)

def _sigmoid(x):
    return torch.sigmoid(x)

def _layernorm(x, axis=-1, eps=1e-05):
    m = x.mean(dim=axis, keepdim=True)
    v = x.var(dim=axis, keepdim=True, unbiased=False)
    return (x - m) / torch.sqrt(v + eps)

def _scatter_add(tgt, idx, src, axis=0):
    return tgt.clone().index_add_(axis, idx, src)

def _segment_sum(src, seg, n):
    out = torch.zeros((n,) + src.shape[1:], dtype=src.dtype)
    return out.index_add_(0, seg, src)

def _pad(x, pw):
    flat = tuple((v for pair in reversed(pw) for v in pair))
    return torch.nn.functional.pad(x, flat)
kernel_name = 'gated_mix__memory_aug_recurrent_mem_tr__moe_arch_mod__prompt'

def setup_inputs():

    _w = lambda a: (lambda t: t.to(torch.bfloat16) if t.is_floating_point() else t)(torch.as_tensor(a))

    def _A_setup():
        B, S, Dm = (1, 2048, 576)
        H, Dh = (32, 128)
        M, seg = (8, 32)
        seg = min(seg, S)
        S = S // seg * seg
        return {'x': _w((lambda *s: torch.randn(*s, dtype=torch.bfloat16) * 0.05)(B, S, Dm)), 'mem0': _w((lambda *s: torch.randn(*s, dtype=torch.bfloat16) * 0.8)(B, M, Dm)), 'Wq': _w((lambda *s: torch.randn(*s, dtype=torch.bfloat16) * 3.2)(Dm, H, Dh) * Dm ** (-0.5)), 'Wk': _w((lambda *s: torch.randn(*s, dtype=torch.bfloat16) * 3.2)(Dm, H, Dh) * Dm ** (-0.5)), 'Wv': _w((lambda *s: torch.randn(*s, dtype=torch.bfloat16) * 0.8)(Dm, H, Dh) * Dm ** (-0.5)), 'Wo': _w((lambda *s: torch.randn(*s, dtype=torch.bfloat16) * 0.8)(H, Dh, Dm) * (H * Dh) ** (-0.5)), 'seg_len': seg}
    _A_in = _A_setup()

    def _B_setup():
        B, S, D, F, C = (1, 2048, 576, 4608, 8)
        return {'x': _w((lambda *s: torch.randn(*s, dtype=torch.bfloat16) * 0.05)(B, S, D)), 'w_r': _w((lambda *s: torch.randn(*s, dtype=torch.bfloat16) * 3.2)(D)), 'w_gate': _w((lambda *s: torch.randn(*s, dtype=torch.bfloat16) * 0.1)(D, F)), 'w_up': _w((lambda *s: torch.randn(*s, dtype=torch.bfloat16) * 0.1)(D, F)), 'w_down': _w((lambda *s: torch.randn(*s, dtype=torch.bfloat16) * 0.1)(F, D))}
    _B_in = _B_setup()
    return {'A_x': _A_in['x'], 'A_mem0': _A_in['mem0'], 'A_Wq': _A_in['Wq'], 'A_Wk': _A_in['Wk'], 'A_Wv': _A_in['Wv'], 'A_Wo': _A_in['Wo'], 'A_seg_len': _A_in['seg_len'], 'B_x': _B_in['x'], 'B_w_r': _B_in['w_r'], 'B_w_gate': _B_in['w_gate'], 'B_w_up': _B_in['w_up'], 'B_w_down': _B_in['w_down'], 'gate_w': _w((lambda *s: torch.randn(*s, dtype=torch.bfloat16) * 0.05)(576) * 16.0)}

def reference(A_x, A_mem0, A_Wq, A_Wk, A_Wv, A_Wo, A_seg_len, B_x, B_w_r, B_w_gate, B_w_up, B_w_down, gate_w):

    def _A_ref(x, mem0, Wq, Wk, Wv, Wo, seg_len):
        B, S, Dm = x.shape
        H, Dh = (Wq.shape[1], Wq.shape[2])
        M = mem0.shape[1]
        scale = Dh ** (-0.5)
        n_seg = S // seg_len
        L = M + seg_len
        idx = torch.arange(L)
        mask = (idx[:, None] < M) | (idx[:, None] >= idx[None, :])
        mem = mem0
        outs = []
        for s in range(n_seg):
            xs = x[:, s * seg_len:(s + 1) * seg_len, :].clone()
            h = torch.concatenate([mem, xs], axis=1)
            q = torch.einsum('btd,dhe->bhte', h, Wq)
            k = torch.einsum('btd,dhe->bhte', h, Wk)
            v = torch.einsum('btd,dhe->bhte', h, Wv)
            scores = torch.einsum('bhqe,bhke->bhqk', q, k) * scale
            scores = torch.where(mask[None, None], scores, -1000000000.0)
            p = _softmax(scores, axis=-1)
            o = torch.einsum('bhqk,bhke->bhqe', p, v)
            o = torch.einsum('bhte,hed->btd', o, Wo)
            mem = o[:, :M, :].clone()
            outs.append(o[:, M:, :])
        return torch.concatenate(outs, axis=1)

    def _B_ref(x, w_r, w_gate, w_up, w_down):
        B, S, D = x.shape
        C = 8
        r = x @ w_r
        idx = torch.argsort(-r, axis=-1)[:, :C]
        idx_e = (lambda x, n, axis: torch.repeat_interleave(x, n, dim=axis))(idx.reshape(B, C, 1), D, axis=2)
        x_sel = (lambda x, i, axis: torch.take_along_dim(x, i, dim=axis))(x, idx_e, axis=1)
        g = _silu(x_sel @ w_gate)
        u = x_sel @ w_up
        y = g * u @ w_down
        r_sel = _sigmoid((lambda x, i, axis: torch.take_along_dim(x, i, dim=axis))(r, idx, axis=1))
        y = y * r_sel.reshape(B, C, 1)
        b_off = (torch.arange(B) * S).reshape(B, 1)
        flat_idx = (idx + b_off).reshape(B * C)
        zero = (x * 0.0).reshape(B * S, D)
        upd = _scatter_add(zero, flat_idx, y.reshape(B * C, D), axis=0)
        return x + upd.reshape(B, S, D)
    x = A_x
    g = _sigmoid((x * gate_w).sum(-1, keepdims=True))
    a = _A_ref(x, A_mem0, A_Wq, A_Wk, A_Wv, A_Wo, A_seg_len)
    b = _B_ref(x, B_w_r, B_w_gate, B_w_up, B_w_down)
    return g * a + (1 - g) * b
```

```python
import re

REG_RE = re.compile(r"^(-|\|)?(abs\()?([vas])(?:(\d+)|\[(\d+):(\d+)\])\)?\|?$")

def parse_reg(tok):
    tok = tok.strip()
    if tok in ("vcc",): return {("s", 106), ("s", 107)}
    if tok == "vcc_lo": return {("s", 106)}
    if tok == "vcc_hi": return {("s", 107)}
    if tok == "exec": return {("s", 126), ("s", 127)}
    if tok == "m0": return {("s", 124)}
    m = REG_RE.match(tok)
    if not m: return set()
    f = m.group(3)
    if m.group(4) is not None:
        return {(f, int(m.group(4)))}
    return {(f, i) for i in range(int(m.group(5)), int(m.group(6)) + 1)}

TRANS = ("v_exp_f32", "v_log_f32", "v_rcp_f32", "v_rsq_f32", "v_sqrt_f32", "v_sin_f32", "v_cos_f32", "v_rcp_iflag_f32")

class Ins:
    def __init__(self, text):
        self.text = text
        t = text.split(";")[0].strip()
        self.label = None
        self.rd = set(); self.wr = set()
        self.kind = "other"; self.ws = 1
        self.passes = 0; self.srcc = set(); self.ab = set(); self.dpp = False; self.dpp_src = set()
        self.wide_data = set(); self.target = None; self.lds_dma = False
        if t.endswith(":"):
            self.label = t[:-1]; self.kind = "label"; self.ws = 0; return
        if not t or t.startswith("."):
            self.kind = "dir"; self.ws = 0; return
        parts = t.split(None, 1)
        op = parts[0]; self.op = op
        rest = parts[1] if len(parts) > 1 else ""
        ops = []; depth = 0; cur = ""
        for ch in rest:
            if ch == "[": depth += 1
            if ch == "]": depth -= 1
            if ch == "," and depth == 0:
                ops.append(cur.strip()); cur = ""
            else: cur += ch
        if cur.strip(): ops.append(cur.strip())
        mods = ""
        if ops:
            sp = ops[-1].split(None, 1)
            ops[-1] = sp[0]
            if len(sp) > 1: mods = sp[1]
        self.ops = ops; self.mods = mods
        R = [parse_reg(o) for o in ops]
        if op == "s_nop":
            self.kind = "nop"; self.ws = int(ops[0], 0) + 1
        elif op.startswith("s_cbranch") or op == "s_branch":
            self.kind = "branch"; self.target = ops[0]
        elif op.startswith("v_mfma") or op.startswith("v_smfmac"):
            self.kind = "mfma"
            self.passes = 8 if "32x32" in op else 4
            self.wr = R[0]; self.ab = R[1] | R[2]
            if op.startswith("v_smfmac"):
                self.srcc = R[0]; self.ab |= R[3]
            else:
                self.srcc = R[3]
            self.rd = self.ab | self.srcc
        elif op.startswith("v_"):
            self.kind = "valu"
            base = op.replace("_e32", "").replace("_e64", "").replace("_dpp", "").replace("_sdwa", "")
            self.base = base
            self.wr = set(R[0]); srcs = R[1:]
            if "_co_" in base and not base.startswith("v_cmp"):
                self.wr |= R[1]; srcs = R[2:]
            for s in srcs: self.rd |= s
            if base.startswith("v_permlane") and "swap" in base:
                self.wr = R[0] | R[1]; self.rd = R[0] | R[1]; self.kind = "valu"; self.perm = True
            if base in ("v_fmac_f32", "v_pk_fmac_f16", "v_dot2c_f32_bf16", "v_writelane_b32"):
                self.rd |= R[0]
            if "_dpp" in op or "quad_perm" in mods or "row_" in mods:
                self.dpp = True; self.dpp_src = R[1]
                self.rd |= R[0]
        elif op.startswith("ds_"):
            self.kind = "ds"
            if op.startswith("ds_read") or op.startswith("ds_bpermute") or op.startswith("ds_swizzle") or op.startswith("ds_permute") or "_rtn" in op:
                self.wr = R[0]
                for s in R[1:]: self.rd |= s
            else:
                for s in R: self.rd |= s
        elif op.startswith("buffer_") or op.startswith("global_"):
            self.kind = "vmem"
            if op in ("buffer_inv", "buffer_wbl2"):
                pass
            elif "lds" in mods.split() or op.startswith("global_load_lds"):
                self.lds_dma = True
                for s in R: self.rd |= s
                self.rd |= {("s", 124)}
            elif "_load" in op:
                self.wr = R[0]
                for s in R[1:]: self.rd |= s
            elif "atomic" in op:
                ret = "sc0" in mods.split()
                if op.startswith("global_") and ret:
                    self.wr = R[0]
                    for s in R[1:]: self.rd |= s
                else:
                    for s in R: self.rd |= s
                    if ret: self.wr = R[0]
            else:
                for s in R: self.rd |= s
                if "x3" in op or "x4" in op:
                    self.wide_data = R[0] if op.startswith("buffer_") else R[1]
        elif op.startswith("s_"):
            self.kind = "salu"
            if op.startswith("s_cmp") or op.startswith("s_bitcmp") or op in ("s_waitcnt", "s_barrier", "s_endpgm", "s_sleep", "s_setprio"):
                for s in R: self.rd |= s
            else:
                if R: self.wr = set(R[0])
                for s in R[1:]: self.rd |= s
                if "saveexec" in op: self.wr |= {("s", 126), ("s", 127)}

def vec(regs): return {r for r in regs if r[0] in "va"}
def sc(regs): return {r for r in regs if r[0] == "s"}

def need(p, c):
    n = 0
    if p.kind == "valu":
        pw = vec(p.wr); ps = sc(p.wr)
        if c.kind == "mfma" and pw & c.rd: n = max(n, 2)
        if c.kind == "valu":
            if c.dpp and pw & c.dpp_src: n = max(n, 2)
            if getattr(c, "perm", False) and pw & c.rd: n = max(n, 2)
            if p.base in TRANS and c.base not in TRANS and pw & c.rd: n = max(n, 1)
            if p.base in TRANS and c.base in TRANS and pw & c.rd: n = max(n, 1)
            if c.base in ("v_readfirstlane_b32", "v_readlane_b32") and pw & c.rd: n = max(n, 1)
            if ps & c.rd:
                n = max(n, 4 if c.base in ("v_readlane_b32", "v_writelane_b32") else 2)
        if c.kind == "vmem" and ps & c.rd: n = max(n, 5)
        if c.kind == "salu" and ps & c.rd: n = max(n, 1)
    if p.kind == "mfma":
        big = {4: 8, 8: 12}[p.passes]; ovl = {4: 6, 8: 10}[p.passes]; war = {4: 3, 8: 7}[p.passes]
        if c.kind == "mfma":
            if p.wr & c.ab: n = max(n, big)
            if p.wr & c.srcc:
                if not (p.wr == c.srcc and p.passes == c.passes): n = max(n, ovl)
            elif p.wr & c.wr: n = max(n, ovl)
        elif c.kind in ("valu", "ds", "vmem"):
            if p.wr & (c.rd | c.wr): n = max(n, big)
            if c.kind == "valu" and p.srcc & c.wr: n = max(n, war)
    if p.kind == "salu":
        if ("s", 124) in p.wr and c.lds_dma: n = max(n, 1)
    if p.kind == "vmem" and p.wide_data:
        if c.kind == "valu" and p.wide_data & c.wr: n = max(n, 2)
        elif c.kind in ("ds", "vmem", "mfma") and p.wide_data & c.wr: n = max(n, 1)
    return n

class Asm:
    def __init__(self):
        self.L = []
        self.uid = 0
    def __call__(self, s):
        for line in s.split("\n"):
            line = line.strip()
            if line: self.L.append(Ins(line))
    def lab(self, name): self.L.append(Ins(name + ":"))
    def newlab(self, p="L"):
        self.uid += 1; return f"{p}_{self.uid}"
    def _fix_seq(self, hist, c):
        dist = 0; req = 0
        for p in reversed(hist):
            if p.kind in ("label", "dir"): continue
            k = need(p, c) - dist
            if k > req: req = k
            dist += p.ws
            if dist > 20: break
        return req
    def finalize(self, verbose=False):
        out = []
        nins = 0
        for c in self.L:
            if c.kind not in ("label", "dir"):
                hist = []
                for p in reversed(out[-40:]):
                    if p.kind not in ("label", "dir") and (p.op in ("s_branch", "s_endpgm")): break
                    hist.append(p)
                hist.reverse()
                k = self._fix_seq(hist, c)
                if k > 0:
                    o = Ins(f"s_nop {k-1} ; auto"); out.append(o); nins += 1
            out.append(c)
        pos = {c.label: i for i, c in enumerate(out) if c.kind == "label"}
        for i, b in enumerate(out):
            if b.kind == "branch" and b.target in pos:
                hist = [p for p in out[max(0, i - 30): i + 1]]
                j = pos[b.target]
                dist = 0
                for c in out[j: j + 30]:
                    if c.kind in ("label", "dir"): continue
                    k = self._fix_seq(hist, c)
                    if k > 0:
                        raise RuntimeError(f"hazard across branch '{b.text}' -> '{c.text}' needs {k} more")
                    hist.append(c); dist += c.ws
                    if dist > 20 or c.op in ("s_branch", "s_endpgm"): break
        self.out = out
        return "\n".join((c.text if c.kind == "label" else "    " + c.text) for c in out) + "\n"

def kernel_header(name):
    return f".globl {name}\n.p2align 8\n.type {name},@function\n{name}:\n"

def kernel_desc(name, vgpr, sgpr=102, accum=None, kernarg=128):
    if accum is None: accum = min(256, (vgpr + 3) // 4 * 4)
    return f""".p2align 6
.amdhsa_kernel {name}
  .amdhsa_next_free_vgpr {vgpr}
  .amdhsa_next_free_sgpr {sgpr}
  .amdhsa_accum_offset {accum}
  .amdhsa_group_segment_fixed_size 0
  .amdhsa_kernarg_size {kernarg}
  .amdhsa_user_sgpr_count 2
  .amdhsa_user_sgpr_kernarg_segment_ptr 1
  .amdhsa_system_sgpr_workgroup_id_x 1
  .amdhsa_float_denorm_mode_32 3
.end_amdhsa_kernel
"""
```

```python
from asmlib import *
from layout import *

class Cnt:
    def __init__(self, a, name, maxn):
        self.a = a; self.name = name; self.maxn = maxn; self.q = []
    def issue(self, tag): self.q.append(tag)
    def wait(self, tag):
        idx = max(i for i, t in enumerate(self.q) if t == tag)
        n = len(self.q) - 1 - idx
        self.a(f"s_waitcnt {self.name}({min(n, self.maxn)})")
        self.q = self.q[idx + 1:] if n <= self.maxn else self.q[-self.maxn:]
    def wait_all(self):
        self.a(f"s_waitcnt {self.name}(0)"); self.q = []

def vr(b, n): return f"v[{b}:{b+n-1}]"

def srd(a, d, lo, size):
    a(f"s_mov_b32 s{d}, s{lo}")
    a(f"s_and_b32 s{d+1}, s{lo+1}, 0xffff")
    a(f"s_mov_b32 s{d+2}, {size:#x}")
    a(f"s_mov_b32 s{d+3}, 0x20000")

vIDX, vMS, vM1, vM2, vM3, vWA0, vWA1, vXq, vXk, vXR, vXO, vJ = range(12)
F = [12, 16, 20, 24, 28, 32]
AQ0, AQ1, AK0, AK1 = 36, 40, 44, 48
ST = 52
KX0, KX1 = 68, 72
E = 76
sWS, sWQ, sWK, sWV, sWO, sM0, sDB = 8, 12, 16, 20, 24, 28, 32
sW, sH, sS, sTAG = 36, 37, 38, 39
mP, mN6, mL18, mS0, mS1, mS2, mODD = 40, 42, 44, 46, 48, 50, 52
sKV0, sKV1, sKV2, sKV3 = 54, 55, 56, 57
sKVM, sPSo, sPLo, sMOo, sMI0, sMI1, sMI2, sARM, sPF = 58, 59, 60, 61, 62, 63, 64, 65, 66
sC = 68
sT0, sT1, sT2, sT3 = 70, 71, 72, 73
sSPIN = 74
sTS = 76
mLO = 96
sONE = 98
sMOb, sMIb, sARb = 100, 101, 67
SLOT = 16384

CH = lambda j: 16384 * (j + 1)
RES = [("q", 0), ("k", 0), ("q", 3), ("q", 7), ("k", 2), ("k", 3), ("k", 8), ("o", 1), ("o", 8)]
ALLCH = [(m, p) for m in "qkv" for p in range(9)] + [("o", t) for t in range(9)]
REGCH = [c for c in ALLCH if c not in RES]
assert len(REGCH) == 27
WREG = {}
_n = 0
for c in REGCH:
    for tau in range(2):
        if _n < 22: WREG[c + (tau,)] = ("v", 80 + 8 * _n)
        else: WREG[c + (tau,)] = ("a", 8 * (_n - 22))
        _n += 1
def wr(c, tau):
    f, b = WREG[c + (tau,)]; return f"{f}[{b}:{b+7}]"

def gen_R(a, tstamp=False, sc_out="", nsteps=64, d1=0, d2=0, pf=2, nocomm=0, noexp=0, g1=0, g2=0, dw=0, two1=0, two2=0):
    lg = Cnt(a, "lgkmcnt", 15); vm = Cnt(a, "vmcnt", 63)
    tsn = [0]
    def ts():
        if tstamp == 1 or (tstamp in (2, 4) and tsn[0] in (0, 6, 8)):
            a(f"s_memtime s[{sTS+2*tsn[0]}:{sTS+2*tsn[0]+1}]")
        tsn[0] += 1
    def tc(i):
        if tstamp == 2: a(f"s_memtime s[{sTS+2*i}:{sTS+2*i+1}]")
    a(f"s_load_dwordx4 s[76:79], s[0:1], {A_MEM0}")
    a(f"s_load_dwordx4 s[80:83], s[0:1], {A_WK}")
    a(f"s_load_dwordx2 s[84:85], s[0:1], {A_WO}")
    a(f"s_load_dwordx4 s[88:91], s[0:1], {DBG}")
    a("v_lshrrev_b32 v12, 6, v0")
    a("v_and_b32 v13, 63, v0")
    a(f"v_readfirstlane_b32 s{sW}, v12")
    a("v_and_b32 v14, 15, v13")
    a("v_lshrrev_b32 v15, 4, v13")
    a("s_waitcnt lgkmcnt(0)")
    srd(a, sM0, 76, 9216); srd(a, sWQ, 78, 4718592); srd(a, sWK, 80, 4718592); srd(a, sWV, 82, 4718592)
    srd(a, sWO, 84, 4718592); srd(a, sDB, 88, 256); srd(a, sWS, 90, WS_SIZE)
    L, C, G = 13, 14, 15
    a(f"v_lshlrev_b32 v{vMS}, 4, v0")
    for k, r in ((1, vM1), (2, vM2), (3, vM3)): a(f"v_xor_b32 v{r}, {k<<10:#x}, v{vMS}")
    a(f"v_and_b32 v16, 2, v{L}"); a(f"v_cmp_ne_u32 s[{mP}:{mP+1}], 0, v16")
    a(f"v_cmp_gt_u32 s[{mN6}:{mN6+1}], 6, v{C}")
    a(f"v_cmp_gt_u32 s[{mL18}:{mL18+1}], 18, v{L}")
    a(f"v_lshrrev_b32 v16, 1, v{C}")
    for k, m in enumerate((mS0, mS1, mS2)): a(f"v_cmp_eq_u32 s[{m}:{m+1}], {k}, v16")
    a(f"v_and_b32 v16, 1, v{L}"); a(f"v_cmp_ne_u32 s[{mODD}:{mODD+1}], 0, v16")
    def pv(p):
        x = 0xE if p else 0x4; val = 0x5 if p else 0x4
        return x | val << 4 | x << 8 | val << 12
    a(f"v_cmp_gt_u32 s[{mLO}:{mLO+1}], 32, v{L}")
    a(f"v_mov_b32 v16, {(pv(0) << 16) | 0x4444:#x}"); a(f"v_mov_b32 v18, {(pv(1) << 16) | 0xEEEE:#x}")
    a(f"v_cndmask_b32 v{vIDX}, v16, v18, s[{mP}:{mP+1}]")
    R, CC = 16, 17
    a(f"v_lshrrev_b32 v{R}, 2, v{C}"); a(f"v_and_b32 v{CC}, 3, v{C}")
    a(f"v_lshrrev_b32 v18, 1, v{G}")
    a(f"v_and_b32 v19, 1, v{G}")
    a(f"v_lshrrev_b32 v20, 1, v{R}")
    a(f"v_and_b32 v21, 1, v{R}")
    a("v_lshl_or_b32 v22, v18, 4, v21")
    a("v_lshl_or_b32 v22, v19, 2, v22")
    a("v_lshl_or_b32 v22, v20, 3, v22")
    a("v_lshl_or_b32 v23, v19, 1, v21")
    a("v_lshl_or_b32 v23, v20, 2, v23")
    a(f"s_lshl_b32 s{sT0}, s{sW}, 1")
    a(f"v_xor_b32 v23, s{sT0}, v23")
    a("v_lshlrev_b32 v22, 8, v22")
    a("v_lshl_or_b32 v22, v23, 5, v22")
    a(f"v_lshl_or_b32 v22, v{CC}, 3, v22")
    a(f"v_add_u32 v{vWA0}, 0x4000, v22")
    a(f"v_xor_b32 v{vWA1}, 32, v{vWA0}")
    a(f"v_lshlrev_b32 v22, 3, v{C}")
    a("v_lshl_or_b32 v22, v19, 7, v22")
    a(f"v_lshl_or_b32 v{vXR}, v18, 10, v22")
    a("v_lshl_or_b32 v22, v18, 9, v22")
    a(f"s_lshl_b32 s{sT0}, s{sW}, 10")
    a(f"v_or_b32 v{vXO}, s{sT0}, v22")
    a(f"v_lshlrev_b32 v22, 5, v{CC}")
    a("v_lshl_or_b32 v22, v21, 8, v22")
    a("v_lshl_or_b32 v22, v20, 7, v22")
    a(f"v_or_b32 v22, s{sT0}, v22")
    a(f"v_lshl_or_b32 v{vXq}, v{G}, 3, v22")
    a("v_lshl_or_b32 v22, v18, 3, v22")
    a(f"v_lshl_or_b32 v{vXk}, v19, 4, v22")
    a(f"s_lshl_b32 s{sT0}, s{sW}, 15"); a(f"s_lshl_b32 s{sT1}, s{sH}, 7")
    a(f"s_add_u32 s{sPSo}, s{sT0}, s{sT1}"); a(f"s_add_u32 s{sPSo}, s{sPSo}, {PART:#x}")
    a(f"s_lshl_b32 s{sT0}, s{sW}, 5"); a(f"s_add_u32 s{sT0}, s{sT0}, s{sH}"); a(f"s_lshl_b32 s{sT0}, s{sT0}, 12")
    a(f"s_lshl_b32 s{sT1}, s{sW}, 10"); a(f"s_sub_u32 s{sT0}, s{sT0}, s{sT1}")
    a(f"s_add_u32 s{sPLo}, s{sT0}, {PART:#x}")
    a(f"s_mul_i32 s{sT0}, s{sW}, 3072"); a(f"s_lshl_b32 s{sT2}, s{sH}, 5"); a(f"s_add_u32 s{sT0}, s{sT0}, s{sT2}")
    a(f"s_add_u32 s{sMOb}, s{sT0}, {MEMS:#x}")
    a(f"s_mov_b32 s{sMIb}, {MEMS + 8192:#x}")
    a(f"s_mul_i32 s{sT0}, s{sH}, 288"); a(f"s_add_u32 s{sARb}, s{sT0}, {MEMS - 3072:#x}")
    a(f"s_add_u32 s{sARM}, s{sARb}, {SLOT}")
    a(f"s_lshl_b32 s{sT0}, s{sH}, 14"); a(f"s_add_u32 s{sKV0}, s{sT0}, {KVX:#x}")
    a(f"s_add_u32 s{sKV1}, s{sKV0}, 4096"); a(f"s_add_u32 s{sKV2}, s{sKV0}, 8192"); a(f"s_add_u32 s{sKV3}, s{sKV0}, 12288")
    pass
    a(f"s_lshl_b32 s{sT0}, s{sH}, 12"); a(f"s_add_u32 s{sKVM}, s{sT0}, {KVM:#x}")
    import struct, math
    cbits = struct.unpack("<I", struct.pack("<f", (128 ** -0.5) * math.log2(math.e)))[0]
    a(f"s_mov_b32 s{sC}, {cbits:#x}"); a(f"s_mov_b32 s{sC+1}, {cbits:#x}")
    a(f"s_mov_b32 s{sSPIN}, 0")
    a("v_mov_b64 v[24:25], 0"); a("v_mov_b64 v[26:27], 0")
    a(f"s_cmp_eq_u32 s{sW}, 3"); a("s_cbranch_scc1 R_init3")
    for j in range(4): a(f"buffer_store_dwordx4 v[24:27], v{vMS}, s[{sWS}:{sWS+3}], s{sPLo} offen offset:{1024*j}")
    a("s_branch R_init_done")
    a.lab("R_init3")
    a("v_mov_b64 v[24:25], -1"); a("v_mov_b64 v[26:27], -1")
    a(f"s_mov_b64 exec, s[{mL18}:{mL18+1}]")
    a(f"buffer_store_dwordx4 v[24:27], v{vMS}, s[{sWS}:{sWS+3}], s{sARM} offen")
    a(f"s_add_u32 s{sARM}, s{sARM}, {SLOT}")
    a(f"buffer_store_dwordx4 v[24:27], v{vMS}, s[{sWS}:{sWS+3}], s{sARM} offen")
    a("s_mov_b64 exec, -1")
    a.lab("R_init_done")
    a("s_waitcnt vmcnt(0)")
    a("s_barrier")
    a(f"v_cmp_eq_u32 vcc, 0, v{vMS}")
    a(f"s_and_saveexec_b64 s[{sT0}:{sT1}], vcc")
    a("s_cbranch_execz R_init_sig")
    a("v_mov_b32 v24, 1"); a("v_mov_b32 v25, 36")
    a(f"buffer_atomic_add v24, v25, s[{sDB}:{sDB+3}], 0 offen")
    a.lab("R_init_sig")
    a("s_mov_b64 exec, -1")
    a(f"s_lshl_b32 s{sT0}, s{sW}, 2")
    a("v_lshlrev_b32 v22, 1, v19")
    a(f"v_or_b32 v22, s{sT0}, v22")
    a(f"v_xor_b32 v22, v22, v{C}")
    a("v_lshrrev_b32 v23, 2, v22")
    a(f"v_add_u32 v24, s{sT0}, v{G}")
    a("v_lshlrev_b32 v24, 13, v24")
    a("v_lshl_or_b32 v32, v22, 4, v24")
    for k in range(4):
        a(f"v_xor_b32 v24, {k}, v23")
        a(f"v_lshl_or_b32 v{28+k}, v24, 19, v32")
    a(f"s_lshr_b32 s{sT0}, s{sW}, 1"); a(f"s_lshl_b32 s{sT0}, s{sT0}, 4")
    a(f"s_and_b32 s{sT1}, s{sW}, 1"); a(f"s_lshl_b32 s{sT1}, s{sT1}, 2"); a(f"s_add_u32 s{sT0}, s{sT0}, s{sT1}")
    a("v_bfe_u32 v24, v22, 1, 1")
    a(f"v_lshl_add_u32 v24, v24, 6, v{G}")
    a(f"v_add_u32 v24, s{sT0}, v24")
    a("v_mul_u32_u24 v24, 1152, v24")
    a("v_lshl_add_u32 v24, v23, 5, v24")
    a("v_and_b32 v25, 1, v22")
    a("v_lshl_add_u32 v33, v25, 4, v24")
    a(f"s_lshl_b32 s{sT2}, s{sH}, 8")
    a(f"s_mul_i32 s{sT3}, s{sH}, 147456")
    a(f"s_lshl_b32 s75, s{sW}, 10")
    def dma(ch, slot):
        m_, p = ch
        for m in range(4):
            a(f"s_add_u32 m0, s75, {CH(slot) + m*4096:#x}")
            if m_ == "o":
                a(f"s_add_u32 s{sT0}, s{sT3}, {(32*(m>>1) + 8*(m&1))*1152 + p*128:#x}")
                a(f"buffer_load_dwordx4 v33, s[{sWO}:{sWO+3}], s{sT0} offen lds")
            else:
                sr = {"q": sWQ, "k": sWK, "v": sWV}[m_]
                if p == 2: vo, fb = 32, 8
                elif p < 2: vo, fb = 28, 4 * p
                else: vo, fb = 28 + (p - 3) % 3 + 1, 4 * ((p - 3) // 3)
                a(f"s_add_u32 s{sT0}, s{sT2}, {fb*524288 + m*16*8192:#x}")
                a(f"buffer_load_dwordx4 v{vo}, s[{sr}:{sr+3}], s{sT0} offen lds")
    def trd(dst_f, dst_b, tau, off, tag=None, a0=vWA0, a1=vWA1):
        for jj in range(4):
            o = off + (32 * (jj >> 1) + 2 * (jj & 1)) * 256
            assert o < 65536
            a(f"ds_read_b64_tr_b16 {dst_f}[{dst_b+2*jj}:{dst_b+2*jj+1}], v{a1 if tau else a0} offset:{o}")
            if tag: lg.issue(tag)
    for gi in range(3):
        a(f"v_add_u32 v{34+2*gi}, {gi*49152:#x}, v{vWA0}"); a(f"v_add_u32 v{35+2*gi}, {gi*49152:#x}, v{vWA1}")
    order = REGCH + RES
    for gi in range(3):
        for j in range(3): dma(order[3*gi + j], 3*gi + j)
    for gi in range(9):
        a("s_waitcnt vmcnt(24)")
        a("s_barrier")
        sg = gi % 3
        for j in range(3):
            ch = order[3*gi + j]
            for tau in range(2):
                f, b = WREG[ch + (tau,)]
                trd(f, b, tau, j * 16384, a0=34 + 2*sg, a1=35 + 2*sg)
        a("s_waitcnt lgkmcnt(0)")
        a("s_barrier")
        for j in range(3): dma(order[3*(gi+3) + j], 3*sg + j)
    a("s_waitcnt vmcnt(0)")
    a("s_barrier")
    a(f"v_add_u32 v41, 0x10000, v{vMS}"); a(f"v_add_u32 v42, 0x20000, v{vMS}")
    for j in range(9):
        sg = j // 3
        for tau in range(2): trd("v", 44 + 8 * tau, tau, (j % 3) * 16384, a0=34 + 2*sg, a1=35 + 2*sg)
        a("s_waitcnt lgkmcnt(0)")
        a("s_barrier")
        for q_ in range(4):
            off = CH(j) + q_ * 4096
            a(f"ds_write_b128 v{(vMS, 41, 42)[off >> 16]}, {vr(44 + 4*q_, 4)} offset:{off & 0xffff}")
    a(f"v_mov_b32 v{vWA0}, v41"); a(f"v_mov_b32 v{vWA1}, v42")
    a("s_waitcnt lgkmcnt(0)")
    a(f"v_and_b32 v22, 1, v{C}")
    a(f"v_lshl_or_b32 v22, v{R}, 1, v22")
    a("v_mul_u32_u24 v22, 1152, v22")
    a(f"v_lshl_add_u32 v22, v{G}, 5, v22")
    a(f"v_and_b32 v23, 2, v{C}")
    a("v_lshl_add_u32 v40, v23, 3, v22")
    a(f"v_bfe_u32 v22, v{L}, 2, 1")
    a(f"v_lshl_or_b32 v22, v{G}, 1, v22")
    a("v_mul_u32_u24 v22, 1152, v22")
    a(f"v_bfe_u32 v23, v{L}, 3, 1")
    a("v_lshl_add_u32 v22, v23, 4, v22")
    a(f"v_lshl_add_u32 v43, v{CC}, 2, v22")
    a(f"s_lshl_b32 s{sT0}, s{sW}, 7"); a(f"s_lshl_b32 s{sT1}, s{sW}, 5")
    a(f"buffer_load_dwordx4 {vr(F[0],4)}, v40, s[{sM0}:{sM0+3}], s{sT0} offen")
    a(f"buffer_load_dwordx4 {vr(F[1],4)}, v40, s[{sM0}:{sM0+3}], s{sT0} offen offset:512")
    a(f"buffer_load_dword v{E+1}, v43, s[{sM0}:{sM0+3}], s{sT1} offen offset:1024")
    a("v_mov_b32 v41, 36")
    a.lab("R_ready")
    a(f"buffer_load_dword v42, v41, s[{sDB}:{sDB+3}], 0 offen sc1")
    a(f"s_add_u32 s{sSPIN}, s{sSPIN}, 1")
    a(f"s_cmp_gt_u32 s{sSPIN}, 0x100000"); a("s_cbranch_scc1 L_exit")
    a("s_waitcnt vmcnt(0)")
    a(f"v_readfirstlane_b32 s{sT0}, v42")
    a(f"s_cmp_lt_u32 s{sT0}, 32"); a("s_cbranch_scc1 R_ready")
    a("s_barrier")
    a("v_mov_b64 v[40:41], 0"); a("v_mov_b64 v[42:43], 0")
    a(f"ds_write_b128 v{vMS}, v[40:43] offset:8192")
    a(f"s_mov_b32 s{sONE}, 0x3f803f80"); a(f"s_mov_b32 s{sONE+1}, 0x3f803f80")
    def WL(dst, ch, tau, tag=None):
        j = RES.index(ch); out = []
        for hf in range(2):
            off = CH(j) + tau * 8192 + hf * 4096
            out.append(I(f"ds_read_b128 {vr(dst+4*hf,4)}, v{(vMS, vWA0, vWA1)[off >> 16]} offset:{off & 0xffff}", lg if tag else None, tag))
        return out
    def I(text, cnt=None, tag=None):
        def f():
            a(text)
            if cnt is not None: cnt.issue(tag)
        return f
    def run(*items):
        for it in items:
            if isinstance(it, (list, tuple)): run(*it)
            else: it()
    def preload(): run(WL(ST, ("q", 0), 0), WL(ST + 8, ("q", 0), 1))
    def preload2(): run(WL(F[2], ("k", 0), 0), WL(F[4], ("k", 0), 1))
    preload(); preload2()
    for r in range(AQ0, AQ0 + 16, 2): a(f"v_mov_b64 {vr(r,2)}, 0")
    a(f"s_mov_b32 s{sS}, 0"); a(f"s_mov_b32 s{sTAG}, 1")
    a(f"v_mov_b32 v{vJ}, 0")
    for r in list(range(F[0], F[0] + 8)) + [E + 1]: a(f"v_min_u32 v{r}, -2, v{r}")
    a(f"v_and_b32 v{E}, 0x3ff, v{vMS}"); a(f"v_lshrrev_b32 v{E+2}, 2, v{vMS}")
    a("s_waitcnt lgkmcnt(0)")

    WSR = f"s[{sWS}:{sWS+3}]"
    def smf(acc, A, B, pvidx=False):
        a(f"v_smfmac_f32_16x16x64_bf16 {vr(acc,4)}, {vr(A,4)}, {B}, v{vIDX}" + (" abid:1" if pvidx else ""))
    FR = {0: F[0], 1: F[1], 2: E, 3: F[2], 4: F[3], 5: F[4], 6: F[5], 7: F[0], 8: F[1]}
    S0, S1 = vr(ST, 8), vr(ST + 8, 8)
    ACC = {"q": (AQ0, AQ1), "k": (AK0, AK1), "v": (AQ0, AQ1)}
    def M(m, pos, tau, B=None):
        if B is None: B = wr((m, pos), tau)
        return lambda: smf(ACC[m][tau], FR[pos], B)
    def LW(tag): return lambda: lg.wait(tag)
    def VW(tag): return lambda: vm.wait(tag)
    def add2(r): return [I(f"v_add_f32 v{r}, v{r}, v{r+2}"), I(f"v_add_f32 v{r+1}, v{r+1}, v{r+3}")]
    def pkadd(r): a(f"v_pk_add_f32 {vr(r,2)}, {vr(r,2)}, {vr(r+2,2)}")
    def PK(r): return lambda: pkadd(r)
    def cvt(d, x, y): return I(f"v_cvt_pk_bf16_f32 v{d}, v{x}, " + (f"v{y}" if y is not None else "0"))
    def z2(r): return I(f"v_mov_b64 {vr(r,2)}, 0")
    def rdf(pos):
        k = (pos - 3) % 3; off = 4096 * ((pos - 3) // 3)
        return I(f"ds_read_b128 {vr(FR[pos],4)}, v{(vM1,vM2,vM3)[k]} offset:{off}", lg, f"f{pos}")
    def sel(d, x, y): return I(f"v_cndmask_b32_dpp v{d}, v{x}, v{y}, vcc quad_perm:[2,3,2,3] row_mask:0xf bank_mask:0xf")
    BAR = I("s_barrier")
    TS_ = lambda: ts()

    if tstamp == 3:
        a("s_memtime s[76:77]"); a("s_memrealtime s[80:81]"); a("s_waitcnt lgkmcnt(0)")
    a(".p2align 6")
    a.lab("R_step")
    ts()
    a0, a1 = WL(ST, ("q", 3), 0, "a0"), WL(ST + 8, ("q", 3), 1, "a1")
    b0, b1 = WL(ST, ("q", 7), 0, "b0"), WL(ST + 8, ("q", 7), 1, "b1")
    c0, c1 = WL(ST, ("k", 2), 0, "c0"), WL(ST + 8, ("k", 3), 0, "c1")
    d0, d1_ = WL(ST, ("k", 8), 0, "d0"), WL(ST + 8, ("k", 2), 1, "d1")
    e0, e1 = WL(ST, ("k", 3), 1, "e0"), WL(ST + 8, ("k", 8), 1, "e1")
    aq0, aq1, ak0, ak1 = add2(AQ0), add2(AQ1), add2(AK0), add2(AK1)
    sl = [sel(KX1 + r, AQ1 + r, KX0 + r) for r in range(4)]
    NX = 32 * 16384
    def PF(sreg):
        if not pf: return []
        return [I(f"s_add_u32 s{sT0}, s{sreg}, {NX:#x}"), I(f"buffer_load_dword v{vJ}, v{vMS}, {WSR}, s{sT0} offen", vm, "pf")]
    B1 = F[2]
    vm.q = ["l0", "l1", "l2"] + (["y", "y", "y"] if two2 else [])
    CK = E + 3
    run(VW("l0"), lambda: tc(7),
        I(f"v_max3_u32 v{CK}, v{F[0]}, v{F[0]+1}, v{F[0]+2}"), I(f"v_max_u32 v{CK}, v{CK}, v{F[0]+3}"),
        M("q", 0, 0, S0), I(f"ds_write_b128 v{vMS}, {vr(F[0],4)}", lg, "w"),
        M("q", 0, 1, S1), VW("l1"), I(f"v_max3_u32 v{CK}, v{CK}, v{F[1]}, v{F[1]+1}"), I(f"v_max3_u32 v{CK}, v{CK}, v{F[1]+2}, v{F[1]+3}"),
        M("k", 0, 0, vr(F[2], 8)), I(f"ds_write_b128 v{vMS}, {vr(F[1],4)} offset:4096", lg, "w"),
        M("k", 0, 1, vr(F[4], 8)), VW("l2"), I(f"v_max_u32 v{CK}, v{CK}, v{E+1}"),
        M("q", 1, 0), I(f"ds_write_b32 v{E+2}, v{E+1} offset:12288", lg, "w"), I(f"v_cmp_eq_u32 vcc, -1, v{CK}"),
        M("q", 1, 1), I("s_cbranch_vccnz R_fix"), a0[0],
        M("k", 1, 0), a0[1],
        M("k", 1, 1), a1[0], a1[1],
        VW("y") if two2 else [],
        LW("w"), BAR,
        rdf(3), rdf(4), I(f"ds_read_b128 {vr(E,4)}, v{E} offset:12288", lg, "f2"), rdf(5),
        I(f"buffer_load_dwordx4 {vr(KX0,4)}, v{vMS}, {WSR}, s{sKV0} offen", vm, "kx"),
        I(f"buffer_load_dwordx4 {vr(KX1,4)}, v{vMS}, {WSR}, s{sKV1} offen", vm, "kx"),
        I(f"s_mov_b64 vcc, s[{mP}:{mP+1}]"),
        LW("f3"),
        M("q", 3, 0, S0), rdf(6),
        M("q", 3, 1, S1), rdf(8), LW("f4"),
        M("q", 4, 0), rdf(7),
        M("q", 4, 1), b0[0], LW("f2"),
        M("q", 2, 0), b0[1],
        M("q", 2, 1), b1[0], LW("f5"),
        M("q", 5, 0), b1[1],
        M("q", 5, 1), BAR, LW("f8"),
        M("q", 6, 0), PF(sKV0) if pf in (1, 2) else [],
        M("q", 8, 0), LW("b0"),
        M("q", 7, 0, S0), c0[0],
        M("q", 6, 1), c0[1], LW("b1"),
        M("q", 7, 1, S1), c1[0],
        M("q", 8, 1), c1[1], TS_, aq0[0],
        M("k", 4, 0), aq0[1],
        M("k", 5, 0), LW("c0"), cvt(AQ0 + 2, AQ0, AQ0 + 1),
        M("k", 2, 0, S0), d0[0], aq1[0],
        M("k", 6, 0), d0[1], aq1[1], LW("c1"),
        M("k", 3, 0, S1), I(f"ds_write_b32 v{vXq}, v{AQ0+2} offset:{8192+4}", lg, "w"), cvt(AQ0 + 3, AQ1, AQ1 + 1),
        M("k", 7, 0), I(f"ds_write_b32 v{vXq}, v{AQ0+3} offset:{8192+4+512}", lg, "w"),
        M("k", 4, 1), I(f"ds_read_b64_tr_b16 {vr(AQ0,2)}, v{vXO} offset:8192", lg, "xo"),
            I(f"ds_read_b64_tr_b16 {vr(AQ0+2,2)}, v{vXO} offset:{8192+256}", lg, "xo"), LW("d0"),
        M("k", 8, 0, S0), d1_[0],
        M("k", 5, 1), d1_[1],
        M("k", 6, 1), e0[0], VW("kx"),
        M("k", 7, 1), e0[1], LW("xo"),
        I(f"v_mfma_f32_16x16x32_bf16 {vr(AQ1,4)}, {vr(KX0,4)}, {vr(AQ0,4)}, 0"), ak0[0], ak0[1],
        I(f"v_mfma_f32_16x16x32_bf16 {vr(KX0,4)}, {vr(KX1,4)}, {vr(AQ0,4)}, 0"), LW("d1"), cvt(AK0 + 3, AK0, AK0 + 1), z2(AQ0),
        M("k", 2, 1, S1), e1[0], z2(AQ0 + 2),
        e1[1], LW("e0"),
        M("k", 3, 1, S0), I(f"ds_write_b32 v{vXk}, v{AK0+3} offset:8192", lg, "w"), sl[0],
        M("v", 3, 0), I(f"buffer_load_dwordx2 {vr(AK0,2)}, v{vMS}, {WSR}, s{sKV2} offen", vm, "vx"), sl[1], LW("e1"),
        M("k", 8, 1, S1), TS_, sl[2], sl[3],
        M("v", 4, 0), I(f"ds_write_b128 v{vMS}, {vr(KX1,4)} offset:12288", lg, "w"),
        z2(AQ1), z2(AQ1 + 2),
        ak1, cvt(AK1 + 3, AK1, AK1 + 1),
        M("v", 3, 1), I(f"ds_write_b32 v{vXk}, v{AK1+3} offset:{8192+512}", lg, "w"),
        M("v", 4, 1), I(f"buffer_load_dwordx2 {vr(AK1,2)}, v{vMS}, {WSR}, s{sKV2} offen offset:8", vm, "vx"),
        M("v", 5, 0), I(f"buffer_load_dwordx2 {vr(B1,2)}, v{vMS}, {WSR}, s{sKV3} offen", vm, "vx"),
        M("v", 5, 1), I(f"buffer_load_dwordx2 {vr(B1+4,2)}, v{vMS}, {WSR}, s{sKV3} offen offset:8", vm, "vx"),
        LW("w"), BAR)
    xr = [I(f"ds_read_b64_tr_b16 {vr(ST+4*ks+2*x,2)}, v{vXR} offset:{8192 + (ks&1)*2048 + (ks>>1)*512 + x*256}", lg, f"x{ks}")
          for ks in range(4) for x in range(2)]
    SMD = F[0]
    def SM(ks): return I(f"v_mfma_f32_16x16x32_bf16 {vr(SMD,4)}, {vr(ST+4*ks,4)}, {vr(ST+4*ks,4)}, {vr(SMD,4) if ks else 0}")
    def addq(d, x): return [I(f"v_add_f32 v{d+r}, v{d+r}, v{x+r}") for r in range(4)]
    m_, sm_, t_ = SMD + 3, SMD + 2, SMD
    p1, p2, p3 = addq(KX1, KX0), addq(KX1, F[4]), addq(KX1, F[5])
    wA = WL(ST, ("o", 1), 0, "woA") + WL(ST + 8, ("o", 1), 1, "woA")
    def MV(pos, tau, A): return lambda: smf(ACC["v"][tau], A, wr(("v", pos), tau))
    OA0, OA1 = F[4], F[5]
    run(xr[0], xr[1],
        M("v", 6, 0), I(f"ds_read_b128 {vr(KX0,4)}, v{vM1} offset:12288", lg, "p1"), xr[2],
        M("v", 6, 1), xr[3], I(f"ds_read_b128 {vr(F[4],4)}, v{vM2} offset:12288", lg, "p2"),
        M("v", 7, 0), xr[4], xr[5],
        M("v", 7, 1), I(f"ds_read_b128 {vr(F[5],4)}, v{vM3} offset:12288", lg, "p3"), LW("x1"),
        SM(0), xr[6], xr[7],
        SM(1), PF(sKV2), p1[0], p1[1], LW("x2"),
        SM(2), PF(sKV3), p1[2], p1[3],
        M("v", 8, 0), I(f"ds_read_b128 {vr(KX0,4)}, v{vMS}", lg, "o0"), LW("x3"),
        SM(3), TS_, p2[0], p2[1],
        M("v", 8, 1), I(f"ds_read_b128 {vr(F[1],4)}, v{vMS} offset:4096", lg, "o1"), p2[2], p2[3],
        p3,
        sel(sm_, SMD, SMD + 1),
        I(f"v_max3_f32 v{m_}, v{KX1}, v{KX1+1}, v{KX1+2}"),
        I(f"v_max3_f32 v{m_}, v{m_}, v{KX1+3}, v{sm_}"),
        M("v", 2, 0), PF(sKV1) if pf >= 2 else [],
        I(f"v_max_f32_dpp v{m_}, v{m_}, v{m_} quad_perm:[2,3,0,1] row_mask:0xf bank_mask:0xf"),
        I(f"v_mov_b32 v{t_}, v{m_}"),
        M("v", 2, 1), wA[1],
        I(f"v_permlane16_swap_b32 v{t_}, v{m_}"),
        I(f"v_max_f32 v{m_}, v{t_}, v{m_}"),
        I(f"v_mov_b32 v{t_}, v{m_}"), LW("o1"),
        MV(0, 0, KX0), wA[2],
        I(f"v_permlane32_swap_b32 v{t_}, v{m_}"),
        I(f"v_max_f32 v{m_}, v{t_}, v{m_}"),
        MV(1, 0, F[1]), wA[3],
        I(f"v_mul_f32 v{t_}, s{sC}, v{m_}"),
        MV(0, 1, KX0), wA[0],
        I(f"v_fma_f32 v{sm_}, v{sm_}, s{sC}, -v{t_}"),
        MV(1, 1, F[1]), PF(sKV0) if pf == 3 else [],
        [I(f"v_fma_f32 v{KX1+r}, v{KX1+r}, s{sC}, -v{t_}") for r in range(4)],
        I(f"v_exp_f32 v{sm_}, v{sm_}"),
        [I(f"v_exp_f32 v{KX1+r}, v{KX1+r}") for r in range(4)],
        cvt(sm_, sm_, None),
        cvt(E, KX1, KX1 + 1), cvt(E + 2, KX1 + 2, KX1 + 3),
        I(f"v_cndmask_b32 v{E+1}, 0, v{sm_}, s[{mLO}:{mLO+1}]"),
        I(f"v_cndmask_b32 v{E+3}, v{sm_}, 0, s[{mLO}:{mLO+1}]"),
        PK(AQ0), PK(AQ1),
        z2(OA0), z2(OA0 + 2),
        cvt(AK0 + 2, AQ0, AQ0 + 1), cvt(AK1 + 2, AQ0, AQ0 + 1),
        z2(OA1), VW("vx"), z2(OA1 + 2),
        lambda: smf(OA0, E, vr(AK0, 8), True),
        I(f"s_cmp_eq_u32 s{sS}, {nsteps-1}"),
        cvt(B1 + 2, AQ1, AQ1 + 1), cvt(B1 + 6, AQ1, AQ1 + 1),
        I(f"v_mov_b64 {vr(KX0,2)}, s[{sONE}:{sONE+1}]"), I(f"v_mov_b64 {vr(KX0+2,2)}, s[{sONE}:{sONE+1}]"),
        lambda: smf(OA1, E, vr(B1, 8), True),
        I("s_cbranch_scc1 R_done"),
        I(f"v_mfma_f32_16x16x32_bf16 {vr(KX1,4)}, {vr(E,4)}, {vr(KX0,4)}, 0"),
        TS_)
    VST = [I(f"v_mov_b32 v{AK0}, v{AK1+3}"), I(f"v_mov_b32 v{AK0+1}, v{B1+2}"),
           I(f"buffer_store_dwordx4 {vr(AK0,4)}, v{vMS}, {WSR}, s{sKVM} offen{sc_out}", vm, "st")]
    if noexp: VST = []
    wC = WL(ST, ("o", 8), 0, "woC") + WL(ST + 8, ("o", 8), 1, "woC")
    accs = [F[0], F[1], AQ0, AQ1, KX0, F[4], F[5], AK0, AK1]
    run(add2(OA0), z2(F[0]), z2(F[0] + 2), add2(OA1),
        add2(KX1),
        I(f"v_rcp_f32 v{KX1}, v{KX1}"), I(f"v_rcp_f32 v{KX1+1}, v{KX1+1}"),
        z2(F[1]),
        I(f"v_pk_mul_f32 {vr(OA0,2)}, {vr(OA0,2)}, {vr(KX1,2)}"),
        I(f"v_pk_mul_f32 {vr(OA1,2)}, {vr(OA1,2)}, {vr(KX1,2)}"),
        cvt(KX1 + 2, OA0, OA0 + 1),
        cvt(KX1 + 3, OA1, OA1 + 1),
        I(f"ds_write_b64 v{vXq}, {vr(KX1+2,2)}", lg, "w"),
        VST, z2(F[1] + 2), z2(AQ0), z2(AQ0 + 2), z2(AQ1), z2(AQ1 + 2),
        LW("w"), BAR,
        [I(f"ds_read_b64_tr_b16 {vr(F[2]+4*ks+2*x,2)}, v{vXR} offset:{ks*2048 + x*256}", lg, f"a{ks}") for ks in range(2) for x in range(2)],
        z2(KX0), z2(KX0 + 2), z2(F[4]), z2(F[4] + 2), z2(F[5]), z2(F[5] + 2), z2(AK1))
    ts()
    A0, A1 = F[2], F[3]
    def WB(t, ks):
        if t in (1, 8): return (S0, S1)[ks]
        return wr(("o", t), ks)
    def O(t, ks): return lambda: smf(accs[t], (A0, A1)[ks], WB(t, ks))
    def fin(t):
        r = accs[t]; return add2(r) + [cvt(E + t % 3, r, r + 1)]
    def pst(T):
        return I(f"buffer_store_dwordx4 {vr(E,4)}, v{KX1+2}, {WSR}, s{(sPSo, sT0, sT1)[T]} offen", vm, "ps")
    f = [fin(t) for t in range(9)]
    run(LW("a0"), O(0, 0), I(f"s_add_u32 s{sT0}, s{sPSo}, {32*4096:#x}"), z2(AK1 + 2),
        O(1, 0), wC[0], z2(AK0), LW("a1"),
        O(0, 1), wC[1], z2(AK0 + 2),
        O(1, 1), wC[2], I(f"v_and_b32 v{KX1+2}, 0x70, v{vMS}"),
        O(2, 0), wC[3], I(f"v_and_b32 v{KX1+3}, 0x380, v{vMS}"),
        O(2, 1), I(f"s_add_u32 s{sT1}, s{sPSo}, {64*4096:#x}"), I(f"v_lshl_or_b32 v{KX1+2}, v{KX1+3}, 5, v{KX1+2}"), f[0][0],
        O(3, 0), f[0][1], I(f"v_mov_b32 v{E+3}, s{sTAG}"),
        O(3, 1), f[0][2], f[1][0],
        O(4, 0), f[1][1], f[2][0],
        O(4, 1), f[1][2], f[2][1],
        O(5, 0), f[2][2], f[3][0],
        O(5, 1), pst(0), f[3][1],
        O(6, 0), f[4][0], f[3][2],
        O(6, 1), f[4][1], f[4][2],
        O(7, 0), f[5][0], f[5][1],
        O(7, 1), LW("woC"), f[5][2], f[6][0],
        O(8, 0), pst(1), f[6][1],
        O(8, 1), f[7][0], f[7][1], f[6][2], f[7][2],
        PK(accs[8]), f[8][2], pst(2))
    ts()
    preload()
    a(f"s_and_b32 s{sT0}, s{sTAG}, 3"); a(f"s_lshl_b32 s{sT0}, s{sT0}, 14")
    a(f"s_add_u32 s{sMOo}, s{sMOb}, s{sT0}"); a(f"s_add_u32 s{sMI2}, s{sMIb}, s{sT0}")
    a(f"s_add_u32 s{sMI0}, s{sT0}, {MEMS:#x}"); a(f"s_add_u32 s{sMI1}, s{sT0}, {MEMS + 4096:#x}")
    a(f"s_xor_b32 s{sT0}, s{sT0}, 0x8000"); a(f"s_add_u32 s{sARM}, s{sARb}, s{sT0}")
    if tstamp in (1, 2, 4):
        a(f"s_memrealtime s[{sTS+18}:{sTS+19}]")
        a(f"s_lshl_b32 s{sT0}, s{sH}, 2"); a(f"s_add_u32 s{sT0}, s{sT0}, s{sW}"); a(f"s_lshl_b32 s{sT0}, s{sT0}, 6")
        a(f"s_add_u32 s{sT0}, s{sT0}, s{sS}"); a(f"s_lshl_b32 s{sT0}, s{sT0}, 6"); a(f"s_add_u32 s{sT0}, s{sT0}, {TS:#x}")
        a(f"v_bfe_u32 v{F[1]+1}, v{vMS}, 2, 8")
        a("s_waitcnt lgkmcnt(0)")
        for i in range(9): a(f"v_writelane_b32 v{F[1]}, s{sTS+2*i}, {i}")
        a(f"v_writelane_b32 v{F[1]}, s{sTS+18}, 14")
        a(f"v_writelane_b32 v{F[1]}, s{sSPIN}, 15")
        a("s_mov_b64 exec, 0xffff")
        a(f"buffer_store_dword v{F[1]}, v{F[1]+1}, {WSR}, s{sT0} offen")
        a("s_mov_b64 exec, -1")
    if nocomm:
        preload2(); a("s_branch R_h2")
    a(f"s_cmp_eq_u32 s{sW}, 3"); a("s_cbranch_scc1 R_w3")
    a(f"v_mov_b32 v{KX1}, 0x3f80"); a(f"v_mov_b32 v{KX1+1}, 0x3f800000")
    a(f"v_cndmask_b32 v{KX1}, v{KX1}, v{KX1+1}, s[{mODD}:{mODD+1}]")
    for k, m in enumerate((mS0, mS1, mS2)): a(f"v_cndmask_b32 v{KX0+k}, 0, v{KX1}, s[{m}:{m+1}]")
    a(f"v_mov_b32 v{KX0+3}, 0")
    a(f"v_and_b32 v{F[0]}, 0x10, v{vMS}")
    a(f"v_and_b32 v{F[0]+1}, 0xe0, v{vMS}")
    a(f"v_lshl_or_b32 v{F[0]}, v{F[0]+1}, 5, v{F[0]}")
    a(f"v_bfe_u32 v{F[0]+1}, v{vMS}, 8, 1")
    a(f"v_lshl_or_b32 v{F[0]}, v{F[0]+1}, 3, v{F[0]}")
    a(f"v_bfe_u32 v{F[0]+1}, v{vMS}, 9, 1")
    a(f"v_lshl_or_b32 v{F[0]}, v{F[0]+1}, 2, v{F[0]}")
    def gap(n):
        for _ in range(n):
            a(f"v_mov_b32 v{F[0]+2}, 0"); a("s_nop 2")
    def p1_issue(R_):
        for j in range(4): a(f"buffer_load_dwordx4 {vr(R_+4*j,4)}, v{vMS}, {WSR}, s{sPLo} offen offset:{1024*j} sc1")
    def p1_check(R_, fail, younger):
        for j in range(4):
            a(f"s_waitcnt vmcnt({3-j+younger})")
            if j == 0: tc(2)
            if j == 3: tc(3)
            a(f"v_cmp_ne_u32 vcc, s{sTAG}, v{R_+4*j+3}")
            a(f"v_mfma_f32_16x16x32_bf16 {vr(KX1,4)}, {vr(R_+4*j,4)}, {vr(KX0,4)}, {vr(KX1,4) if j else 0}")
            a(f"s_cbranch_vccnz {fail}")
    def spin():
        a(f"s_add_u32 s{sSPIN}, s{sSPIN}, 1")
        a(f"s_cmp_gt_u32 s{sSPIN}, 0x400000"); a("s_cbranch_scc1 L_exit")
    if not two1: preload2()
    gap(d1)
    if dw:
        a(f"s_cmp_eq_u32 s{sW}, 0"); a("s_cbranch_scc1 R_p1")
        gap(dw)
        a(f"s_cmp_eq_u32 s{sW}, 1"); a("s_cbranch_scc1 R_p1")
        gap(dw)
    a.lab("R_p1")
    tc(1)
    if two1:
        p1_issue(AQ0)
        gap(g1)
        a("s_branch R_p1a")
        a.lab("R_p1b")
        p1_issue(AQ0)
        spin()
        p1_check(F[2], "R_p1a", 4)
        a("s_branch R_p1ok")
        a.lab("R_p1a")
        p1_issue(F[2])
        spin()
        p1_check(AQ0, "R_p1b", 4)
        a.lab("R_p1ok")
        a("s_nop 6")
    else:
        p1_issue(AQ0)
        spin()
        p1_check(AQ0, "R_p1", 0)
    a(f"v_permlane32_swap_b32 v{KX1}, v{KX1+2}")
    a(f"v_permlane32_swap_b32 v{KX1+1}, v{KX1+3}")
    pkadd(KX1)
    a(f"v_cvt_pk_bf16_f32 v{KX1}, v{KX1}, v{KX1+1}")
    a(f"s_mov_b64 exec, s[{mN6}:{mN6+1}]")
    a(f"v_min_u32 v{KX1}, -2, v{KX1}")
    a(f"buffer_store_dword v{KX1}, v{F[0]}, {WSR}, s{sMOo} offen")
    a("s_mov_b64 exec, -1")
    a("s_branch R_h2")
    a.lab("R_w3")
    if not two1: preload2()
    a(f"v_mov_b64 {vr(KX0,2)}, -1"); a(f"v_mov_b64 {vr(KX0+2,2)}, -1")
    a(f"s_mov_b64 exec, s[{mL18}:{mL18+1}]")
    a(f"buffer_store_dwordx4 {vr(KX0,4)}, v{vMS}, {WSR}, s{sARM} offen")
    a("s_mov_b64 exec, -1")
    a.lab("R_h2")
    ts(); tc(4)
    a("s_barrier")
    for r in (sKV0, sKV1, sKV2, sKV3): a(f"s_add_u32 s{r}, s{r}, {32*16384:#x}")
    a(f"s_add_u32 s{sKVM}, s{sKVM}, {32*4096:#x}")
    a(f"s_add_u32 s{sS}, s{sS}, 1"); a(f"s_add_u32 s{sTAG}, s{sTAG}, 1")
    def gap2(n):
        for _ in range(n):
            a(f"v_mov_b32 v{KX1}, 0"); a("s_nop 2")
    def p2_issue():
        a(f"buffer_load_dwordx4 {vr(F[0],4)}, v{vMS}, {WSR}, s{sMI0} offen sc1")
        a(f"buffer_load_dwordx4 {vr(F[1],4)}, v{vMS}, {WSR}, s{sMI1} offen sc1")
        a(f"buffer_load_dword v{E+1}, v{E+2}, {WSR}, s{sMI2} offen sc1")
    a(f"v_and_b32 v{E}, 0x3ff, v{vMS}"); a(f"v_lshrrev_b32 v{E+2}, 2, v{vMS}")
    if two1:
        a("s_waitcnt vmcnt(1)")
        preload2()
    gap2(d2)
    tc(5)
    if nocomm:
        a("s_waitcnt vmcnt(0)")
        for r in list(range(F[0], F[0] + 8)) + [E + 1]: a(f"v_mov_b32 v{r}, 0")
    else: p2_issue()
    for r in range(AQ0, AQ0 + 16, 2): a(f"v_mov_b64 {vr(r,2)}, 0")
    gap2(g2)
    if two2 and not nocomm: p2_issue()
    ts()
    a("s_waitcnt lgkmcnt(0)")
    a("s_branch R_step")
    a.lab("R_fix")
    p2_issue()
    a("s_nop 4")
    for r in range(AK0, AK0 + 8, 2): a(f"v_mov_b64 {vr(r,2)}, 0")
    for r in range(AQ0, AQ0 + 8, 2): a(f"v_mov_b64 {vr(r,2)}, 0")
    spin()
    a("s_waitcnt lgkmcnt(0)")
    a("s_branch R_step")
    a.lab("R_done")
    run(VST)
    if tstamp == 3:
        a("s_memtime s[78:79]"); a("s_memrealtime s[82:83]"); a("s_waitcnt lgkmcnt(0)")
        a("s_sub_u32 s78, s78, s76"); a("s_sub_u32 s82, s82, s80")
        a(f"v_mov_b32 v{F[0]}, s78"); a(f"v_mov_b32 v{F[0]+1}, s82"); a(f"v_mov_b32 v{F[0]+2}, s{sSPIN}"); a(f"v_mov_b32 v{F[0]+3}, 0")
        a(f"s_lshl_b32 s{sT0}, s{sH}, 12"); a(f"s_add_u32 s{sT0}, s{sT0}, {TS:#x}")
        a(f"buffer_store_dwordx4 {vr(F[0],4)}, v{vMS}, {WSR}, s{sT0} offen")
    a("s_waitcnt vmcnt(0)")
    a("s_branch L_exit")

def gen_roles(a, nwg=256):
    a(f"s_cmp_ge_u32 s2, {nwg}"); a("s_cbranch_scc1 L_exit")
    a(f"s_load_dwordx2 s[4:5], s[0:1], {DBG}")
    a("s_getreg_b32 s6, hwreg(HW_REG_XCC_ID)")
    a("s_and_b32 s6, s6, 7")
    a("s_waitcnt lgkmcnt(0)")
    srd(a, sDB, 4, 256)
    D = f"s[{sDB}:{sDB+3}]"
    a("v_cmp_eq_u32 vcc, 0, v0")
    a("s_and_saveexec_b64 s[70:71], vcc")
    a("s_cbranch_execz T_join")
    a("s_lshl_b32 s7, s6, 2")
    a("v_mov_b32 v1, s7"); a("v_mov_b32 v2, 1")
    a(f"buffer_atomic_add v2, v1, {D}, 0 offen sc0")
    a("s_waitcnt vmcnt(0)")
    a("v_readfirstlane_b32 s7, v2")
    a("v_mov_b32 v1, 32")
    a("s_cmp_eq_u32 s7, 31"); a("s_cbranch_scc0 T_poll")
    a("s_add_u32 s4, s6, 1")
    a("v_mov_b32 v4, s4"); a("v_mov_b32 v5, 0")
    a(f"buffer_atomic_cmpswap v[4:5], v1, {D}, 0 offen")
    a.lab("T_poll")
    a("s_mov_b32 s5, 0")
    a.lab("T_poll2")
    a(f"buffer_load_dword v3, v1, {D}, 0 offen sc1")
    a("s_add_u32 s5, s5, 1")
    a("s_waitcnt vmcnt(0)")
    a("v_readfirstlane_b32 s4, v3")
    a("s_cmp_gt_u32 s5, 0x100000"); a("s_cbranch_scc1 T_got")
    a("s_cmp_eq_u32 s4, 0"); a("s_cbranch_scc1 T_poll2")
    a.lab("T_got")
    a("s_sub_u32 s4, s4, 1")
    a("s_cmp_eq_u32 s4, s6"); a("s_cbranch_scc0 T_work")
    a("s_cmp_lt_u32 s7, 32"); a("s_cbranch_scc1 T_pub")
    a.lab("T_work")
    a("v_mov_b32 v1, 40"); a("v_mov_b32 v2, 1")
    a(f"buffer_atomic_add v2, v1, {D}, 0 offen sc0")
    a("s_waitcnt vmcnt(0)")
    a("v_add_u32 v2, 32, v2")
    a.lab("T_pub")
    a("v_mov_b32 v1, 0")
    a("ds_write_b32 v1, v2")
    a("s_waitcnt lgkmcnt(0)")
    a.lab("T_join")
    a("s_mov_b64 exec, -1")
    a("s_barrier")
    a("v_mov_b32 v1, 0")
    a("ds_read_b32 v2, v1")
    a("s_waitcnt lgkmcnt(0)")
    a(f"v_readfirstlane_b32 s{sH}, v2")
    a("s_barrier")
    a(f"s_cmp_ge_u32 s{sH}, 32"); a("s_cbranch_scc1 L_worker")

if __name__ == "__main__":
    import sys
    opts = dict(tstamp=0, d1=0, d2=0, nsteps=64, pf=2, nocomm=0, noexp=0, g1=0, g2=0, dw=0, two1=0, two2=0)
    tsl = []
    for x in sys.argv[2:]:
        k, v = x.split("=")
        if k == "tsl": tsl = [int(y) for y in v.split(",")]
        else: opts[k] = int(v)
    a = Asm()
    gen_roles(a)
    gen_R(a, tstamp=opts["tstamp"], d1=opts["d1"], d2=opts["d2"], nsteps=opts["nsteps"], pf=opts["pf"], nocomm=opts["nocomm"], noexp=opts["noexp"], g1=opts["g1"], g2=opts["g2"], dw=opts["dw"], two1=opts["two1"], two2=opts["two2"])
    a.lab("L_worker")
    a.lab("L_exit")
    a("s_endpgm")
    if tsl:
        i0 = [i for i, c in enumerate(a.L) if c.label == "R_step"][0]
        for n, pos in sorted(enumerate(tsl), key=lambda z: -z[1]):
            a.L.insert(i0 + 1 + pos, Ins(f"s_memtime s[{sTS+2*(n+1)}:{sTS+2*(n+1)+1}]"))
    body = a.finalize()
    s = "; @launch kernel=rec_kernel grid=(256,1,1) block=(256,1,1) lds=163840\n"
    s += '.amdgcn_target "amdgcn-amd-amdhsa--gfx950"\n.text\n' + kernel_header("rec_kernel") + body
    s += '.section .rodata,"a"\n' + kernel_desc("rec_kernel", 512, accum=256)
    open(sys.argv[1], "w").write(s)
```

```python
from asmlib import *
from layout import *
from gen_r import Cnt, vr, srd
import struct, math

qWS, qX, qW, qAUX, qOUT = 8, 12, 16, 20, 24
sW, sHD, sS, sSTR, sT0, sT1, sT2, sT3, sBUF, sXO = 36, 37, 38, 39, 40, 41, 42, 43, 44, 45
Q = lambda r: f"s[{r}:{r+3}]"
f32bits = lambda x: struct.unpack("<I", struct.pack("<f", x))[0]

def lane_vars(a):
    a("v_lshrrev_b32 v1, 6, v0")
    a(f"v_readfirstlane_b32 s{sW}, v1")
    a("v_and_b32 v1, 63, v0")
    a("v_and_b32 v2, 15, v0")
    a("v_bfe_u32 v3, v0, 4, 2")
    a("v_lshlrev_b32 v4, 4, v0")

def load_w128(a, srdreg, rowstride, soff, perm_cols, dst, tmp=8):
    t = tmp
    a(f"v_lshlrev_b32 v{t}, 2, v3"); a(f"v_xor_b32 v{t}, v{t}, v2"); a(f"v_lshlrev_b32 v{t}, 4, v{t}")
    a(f"s_lshl_b32 s{sT0}, s{sW}, 2"); a(f"v_add_u32 v{t+1}, s{sT0}, v3")
    a(f"s_mov_b32 s{sT1}, {rowstride}"); a(f"v_mul_lo_u32 v{t+1}, v{t+1}, s{sT1}")
    a(f"v_add_u32 v{t}, v{t}, v{t+1}")
    a(f"s_lshl_b32 s{sT2}, s{sW}, 10")
    for i in range(36):
        a(f"s_add_u32 m0, s{sT2}, {i*4096}")
        a(f"s_add_u32 s{sT0}, s{soff}, {i*16*rowstride}")
        a(f"buffer_load_dwordx4 v{t}, {Q(srdreg)}, s{sT0} offen lds")
    a(f"v_lshrrev_b32 v{t+1}, 2, v2")
    a(f"v_lshl_add_u32 v{t+2}, v3, 3, v{t+1}")
    a(f"v_lshlrev_b32 v{t+2}, 8, v{t+2}")
    a(f"v_xor_b32 v{t+1}, s{sW}, v{t+1}")
    a(f"v_lshl_or_b32 v{t+2}, v{t+1}, 6, v{t+2}")
    a(f"v_and_b32 v{t+1}, 3, v2")
    a(f"v_lshl_or_b32 v{t+2}, v{t+1}, {4 if perm_cols else 3}, v{t+2}")
    a(f"v_add_u32 v{t+3}, 0xc000, v{t+2}"); a(f"v_add_u32 v{t+4}, 0x18000, v{t+2}")
    a("s_waitcnt vmcnt(0)")
    a("s_barrier")
    for ks in range(18):
        for tau in range(2):
            f, b = dst(tau, ks)
            for x in range(2):
                off = (ks % 6) * 8192 + x * 1024 + tau * (8 if perm_cols else 32)
                a(f"ds_read_b64_tr_b16 {f}[{b+2*x}:{b+2*x+1}], v{t+2+ks//6} offset:{off}")
    a("s_waitcnt lgkmcnt(0)")
    a("s_barrier")

XB = 36864

def x_setup(a, permrows, vD0, vD1, vRD):
    a("v_lshrrev_b32 v8, 2, v1")
    a("v_and_b32 v9, 3, v1")
    a("v_lshrrev_b32 v10, 5, v1")
    a("v_lshlrev_b32 v11, 1, v10"); a("v_xor_b32 v9, v9, v11")
    if permrows:
        a("v_bfe_u32 v11, v8, 1, 2"); a("v_lshlrev_b32 v11, 2, v11")
        a("v_lshl_or_b32 v11, v10, 4, v11")
        a("v_and_b32 v8, 1, v8"); a("v_or_b32 v8, v8, v11")
        step = 2
    else: step = 16
    a("v_mul_u32_u24 v8, 1152, v8")
    a(f"v_lshl_add_u32 v{vD0}, v9, 4, v8")
    a(f"v_add_u32 v{vD1}, {step*1152}, v{vD0}")
    a("v_lshrrev_b32 v8, 3, v2"); a("v_lshlrev_b32 v8, 1, v8"); a("v_xor_b32 v8, v8, v3")
    a("v_lshlrev_b32 v8, 4, v8")
    a(f"v_lshl_or_b32 v{vRD}, v2, 6, v8")

def x_dma(a, vD0, vD1, sSeg, sLds):
    a(f"s_mul_i32 s{sT0}, s{sSeg}, {32*1152}")
    a(f"s_add_u32 s{sT0}, s{sT0}, s{sXO}")
    a(f"s_mul_i32 s{sT1}, s{sW}, 9216"); a(f"s_add_u32 s{sT1}, s{sT1}, s{sLds}")
    for i in range(9):
        a(f"s_add_u32 m0, s{sT1}, {i*1024}")
        if i: a(f"s_add_u32 s{sT0}, s{sT0}, 64")
        a(f"buffer_load_dwordx4 v{vD0}, {Q(qX)}, s{sT0} offen lds")

WB = 64
def wdst(tau, ks): return ("v", WB + (ks * 2 + tau) * 4)
ACCB = 16
XW = 32

def gemm_seg(a, vRA, w_is_A):
    order = [(ks, rt) for ks in range(18) for rt in range(2)]
    def rd(i):
        ks, rt = order[i]
        a(f"ds_read_b128 {vr(XW + 4*(i % 8), 4)}, v{vRA} offset:{(rt*18 + ks)*1024}")
    for i in range(6): rd(i)
    for i, (ks, rt) in enumerate(order):
        a(f"s_waitcnt lgkmcnt({min(5, 35 - i)})")
        for tau in range(2):
            acc = vr(ACCB + 4 * (rt * 2 + tau), 4); w_ = vr(wdst(tau, ks)[1], 4); x_ = vr(XW + 4 * (i % 8), 4)
            A, B = (w_, x_) if w_is_A else (x_, w_)
            a(f"v_mfma_f32_16x16x32_bf16 {acc}, {A}, {B}, {acc if ks else 0}")
            if tau == 0 and i + 6 < 36: rd(i + 6)

def proj_prologue(a, wptr_off, perm, pfx):
    a(f"s_load_dwordx2 s[4:5], s[0:1], {A_X}")
    a(f"s_load_dwordx2 s[6:7], s[0:1], {wptr_off}")
    a(f"s_load_dwordx2 s[28:29], s[0:1], {WS}")
    lane_vars(a)
    a("s_waitcnt lgkmcnt(0)")
    srd(a, qX, 4, 2359296); srd(a, qW, 6, 4718592); srd(a, qWS, 28, WS_SIZE)
    a(f"s_lshl_b32 s{sT3}, s{sHD}, 8")
    load_w128(a, qW, 8192, sT3, perm, wdst)

def x_pipeline_start(a, permrows):
    x_setup(a, permrows, 5, 6, 7)
    a(f"s_cmp_ge_u32 s{sW}, 2")
    a("s_cselect_b64 vcc, -1, 0")
    a("v_cndmask_b32 v5, v5, v6, vcc")
    a(f"s_and_b32 s{sXO}, s{sW}, 1"); a(f"s_mul_i32 s{sXO}, s{sXO}, {9*64}")
    a(f"s_mov_b32 s{sBUF}, 0")
    a(f"s_mov_b32 s{sT2}, 0"); x_dma(a, 5, 6, sS, sT2)
    a(f"s_add_u32 s{sT3}, s{sS}, s{sSTR}"); a(f"s_mov_b32 s{sT2}, {XB}"); x_dma(a, 5, 6, sT3, sT2)

def x_pipeline_next(a):
    a(f"v_add_u32 v6, s{sBUF}, v7")
    a(f"s_add_u32 s{sT2}, s{sBUF}, {2*XB}")
    a(f"s_cmp_ge_u32 s{sT2}, {3*XB}"); a(f"s_cselect_b32 s{sT3}, {3*XB}, 0"); a(f"s_sub_u32 s{sT2}, s{sT2}, s{sT3}")
    a(f"s_lshl_b32 s{sT3}, s{sSTR}, 1"); a(f"s_add_u32 s{sT3}, s{sT3}, s{sS}")
    x_dma(a, 5, 6, sT3, sT2)
    a(f"s_add_u32 s{sBUF}, s{sBUF}, {XB}")
    a(f"s_cmp_ge_u32 s{sBUF}, {3*XB}"); a(f"s_cselect_b32 s{sBUF}, 0, s{sBUF}")

def gen_P(a, isK, pfx, sc="", signal=None):
    proj_prologue(a, A_WK if isK else A_WV, isK, pfx)
    x_pipeline_start(a, isK)
    a("s_waitcnt vmcnt(9)")
    a.lab(pfx + "_loop")
    a("s_barrier")
    x_pipeline_next(a)
    gemm_seg(a, 6, isK)
    a(f"s_lshl_b32 s{sT0}, s{sS}, 5"); a(f"s_add_u32 s{sT0}, s{sT0}, s{sHD}"); a(f"s_lshl_b32 s{sT0}, s{sT0}, 14")
    a(f"s_add_u32 s{sT0}, s{sT0}, {KVX + (0 if isK else 8192)}"); a(f"s_add_u32 s{sT1}, s{sT0}, 4096")
    for o in range(2):
        q0, q1 = (ACCB + 8 * o, ACCB + 8 * o + 4) if isK else (ACCB + 4 * o, ACCB + 8 + 4 * o)
        d = 8 + 4 * o
        a(f"v_cvt_pk_bf16_f32 v{d}, v{q0}, v{q0+1}"); a(f"v_cvt_pk_bf16_f32 v{d+1}, v{q0+2}, v{q0+3}")
        a(f"v_cvt_pk_bf16_f32 v{d+2}, v{q1}, v{q1+1}"); a(f"v_cvt_pk_bf16_f32 v{d+3}, v{q1+2}, v{q1+3}")
        a(f"buffer_store_dwordx4 {vr(d,4)}, v4, {Q(qWS)}, s{(sT0, sT1)[o]} offen{sc}")
    a(f"s_add_u32 s{sS}, s{sS}, s{sSTR}")
    a("s_waitcnt vmcnt(11)")
    a(f"s_cmp_lt_u32 s{sS}, 64"); a(f"s_cbranch_scc1 {pfx}_loop")
    a("s_waitcnt vmcnt(0)")
    a("s_branch L_exit")

def gen_QA(a, pfx, sc_in="", sc_out=""):
    proj_prologue(a, A_WQ, True, pfx)
    x_pipeline_start(a, False)
    QL = 3 * XB
    KI, VI = QL + 8192, QL + 8192 + 2048
    KF = 208
    VF = "a"
    MQ = 240
    vQR, vIW, vTR, vVG, vVM, vQW, vL16 = 244, 245, 246, 247, 248, 249, 250
    mk = [48 + 2 * i for i in range(8)]; mG2 = 64; sC = 66
    a(f"s_and_b32 s{sT0}, s{sW}, 1")
    a(f"s_lshr_b32 s{sT1}, s{sW}, 1")
    a(f"v_lshlrev_b32 v{vL16}, 4, v1")
    a(f"v_add_u32 v{vQW}, {QL}, v4")
    a(f"s_lshl_b32 s{sT2}, s{sT0}, 12"); a(f"s_add_u32 s{sT2}, s{sT2}, {QL}")
    a(f"v_add_u32 v{vQR}, s{sT2}, v{vL16}")
    a(f"s_lshl_b32 s{sT2}, s{sW}, 9"); a(f"s_add_u32 s{sT2}, s{sT2}, {KI}")
    a("v_lshlrev_b32 v8, 4, v2"); a("v_lshl_or_b32 v8, v3, 2, v8"); a(f"v_add_u32 v{vIW}, s{sT2}, v8")
    a("v_lshrrev_b32 v8, 2, v2"); a("v_lshl_add_u32 v8, v3, 3, v8"); a("v_lshlrev_b32 v8, 4, v8")
    a("v_and_b32 v9, 1, v2"); a("v_lshl_or_b32 v8, v9, 3, v8"); a(f"v_add_u32 v{vTR}, {KI}, v8")
    a("v_lshrrev_b32 v8, 2, v2"); a("v_and_b32 v9, 3, v2"); a("v_lshl_or_b32 v10, v8, 3, v9")
    a("v_and_b32 v11, 1, v3"); a("v_lshlrev_b32 v12, 4, v10"); a("v_lshl_or_b32 v12, v11, 3, v12")
    a(f"s_lshl_b32 s{sT2}, s{sT1}, 10"); a(f"s_add_u32 s{sT2}, s{sT2}, {VI}"); a(f"v_add_u32 v{vVM}, s{sT2}, v12")
    a("v_and_b32 v12, 15, v10"); a("v_lshl_or_b32 v12, v11, 5, v12"); a("v_lshlrev_b32 v12, 4, v12")
    a("v_lshrrev_b32 v11, 1, v3"); a("v_lshl_or_b32 v12, v11, 3, v12")
    a("v_lshrrev_b32 v11, 3, v2"); a("v_lshl_or_b32 v12, v11, 12, v12")
    a(f"s_lshl_b32 s{sT2}, s{sT1}, 11"); a(f"v_add_u32 v{vVG}, s{sT2}, v12")
    a(f"s_lshl_b32 s{sT2}, s{sT0}, 4"); a(f"v_add_u32 v8, s{sT2}, v2")
    a("v_lshlrev_b32 v9, 3, v3"); a("v_sub_u32 v8, v8, v9")
    for t in range(2):
        for r in range(4):
            a(f"v_cmp_le_i32 s[{mk[t*4+r]}:{mk[t*4+r]+1}], {4*(r>>1) + 2*t + (r&1)}, v8")
    a(f"v_cmp_gt_u32 s[{mG2}:{mG2+1}], 2, v3")
    a(f"s_mov_b32 s{sC}, {f32bits((128 ** -0.5) * math.log2(math.e)):#x}")
    a(f"s_mov_b32 s67, 0xff800000")
    a(f"s_lshl_b32 s46, s{sT0}, 12"); a(f"s_lshl_b32 s{sT2}, s{sT1}, 11"); a(f"s_add_u32 s46, s46, s{sT2}")
    a("s_waitcnt vmcnt(9)")
    a.lab(pfx + "_loop")
    a("s_barrier")
    a(f"s_lshl_b32 s{sT0}, s{sS}, 5"); a(f"s_add_u32 s47, s{sT0}, s{sHD}")
    a(f"s_lshl_b32 s{sT0}, s47, 14"); a(f"s_add_u32 s{sT0}, s{sT0}, {KVX}")
    a(f"s_add_u32 s{sT1}, s{sT0}, 4096"); a(f"s_add_u32 s{sT2}, s{sT0}, 8192")
    a(f"s_lshl_b32 s{sT3}, s47, 12"); a(f"s_add_u32 s{sT3}, s{sT3}, {KVM}")
    a(f"buffer_load_dwordx4 {vr(MQ,4)}, v4, {Q(qWS)}, s{sT3} offen{sc_in}")
    for t in range(2):
        for ks in range(4):
            a(f"buffer_load_dwordx4 {vr(KF + 16*t + 4*ks, 4)}, v{vL16}, {Q(qWS)}, s{(sT0, sT1)[t]} offen offset:{ks*1024}{sc_in}")
    for kk in range(2):
        for tp in range(2):
            for y in range(2):
                b = (kk * 2 + tp) * 4 + 2 * y
                a(f"buffer_load_dwordx2 a[{b}:{b+1}], v{vVG}, {Q(qWS)}, s{sT2} offen offset:{kk*1024 + tp*64 + y*256}{sc_in}")
    x_pipeline_next(a)
    gemm_seg(a, 6, True)
    for rt in range(2):
        q0, q1 = ACCB + 8 * rt, ACCB + 8 * rt + 4
        d = 8 + 4 * rt
        a(f"v_cvt_pk_bf16_f32 v{d}, v{q0}, v{q0+1}"); a(f"v_cvt_pk_bf16_f32 v{d+1}, v{q0+2}, v{q0+3}")
        a(f"v_cvt_pk_bf16_f32 v{d+2}, v{q1}, v{q1+1}"); a(f"v_cvt_pk_bf16_f32 v{d+3}, v{q1+2}, v{q1+3}")
        a(f"ds_write_b128 v{vQW}, {vr(d,4)} offset:{rt*4096}")
    a("s_waitcnt vmcnt(9)")
    a(f"ds_write_b32 v{vIW}, v{MQ+3}"); a(f"ds_write_b32 v{vIW}, v{MQ} offset:256")
    a(f"ds_write_b32 v{vIW}, v{MQ+2} offset:2048"); a(f"ds_write_b32 v{vIW}, v{MQ+1} offset:{2048+256}")
    a("s_waitcnt lgkmcnt(0)")
    a("s_barrier")
    QF = XW
    for ks in range(4): a(f"ds_read_b128 {vr(QF+4*ks,4)}, v{vQR} offset:{ks*1024}")
    for ks in range(4):
        for x in range(2): a(f"ds_read_b64_tr_b16 a[{24+4*ks+2*x}:{25+4*ks+2*x}], v{vTR} offset:{ks*512 + x*64}")
    for kk in range(2):
        for tp in range(2):
            b = 16 + (kk * 2 + tp) * 2
            a(f"ds_read_b64 a[{b}:{b+1}], v{vVM} offset:{kk*512 + tp*64}")
    a("s_waitcnt lgkmcnt(0)")
    T0, T1, TM = 16, 20, 24
    for ks in range(4):
        for T, A in ((T0, vr(KF + 4*ks, 4)), (T1, vr(KF + 16 + 4*ks, 4)), (TM, f"a[{24+4*ks}:{27+4*ks}]")):
            a(f"v_mfma_f32_16x16x32_bf16 {vr(T,4)}, {A}, {vr(QF+4*ks,4)}, {vr(T,4) if ks else 0}")
    a("v_mov_b32 v28, s67")
    for i in range(8): a(f"v_cndmask_b32 v{T0+i}, v28, v{T0+i}, s[{mk[i]}:{mk[i]+1}]")
    for i in range(4): a(f"v_cndmask_b32 v{TM+i}, v28, v{TM+i}, s[{mG2}:{mG2+1}]")
    a("v_max3_f32 v29, v16, v17, v18")
    for i in range(19, 27, 2): a(f"v_max3_f32 v29, v29, v{i}, v{i+1}")
    a("v_max_f32 v29, v29, v27")
    def xl(op):
        for sw in ("16", "32"):
            a("v_mov_b32 v30, v29"); a(f"v_permlane{sw}_swap_b32 v30, v29"); a(f"{op} v29, v30, v29")
    xl("v_max_f32")
    a(f"v_mul_f32 v29, s{sC}, v29")
    for i in range(16, 28): a(f"v_fma_f32 v{i}, v{i}, s{sC}, -v29")
    for i in range(16, 28): a(f"v_exp_f32 v{i}, v{i}")
    a("v_add_f32 v29, v16, v17")
    for i in range(18, 28): a(f"v_add_f32 v29, v29, v{i}")
    xl("v_add_f32")
    a("v_rcp_f32 v29, v29")
    for i in range(16, 28): a(f"v_mul_f32 v{i}, v{i}, v29")
    a("v_cvt_pk_bf16_f32 v8, v16, v17"); a("v_cvt_pk_bf16_f32 v9, v20, v21")
    a("v_cvt_pk_bf16_f32 v10, v18, v19"); a("v_cvt_pk_bf16_f32 v11, v22, v23")
    a("v_cvt_pk_bf16_f32 v12, v24, v25"); a("v_cvt_pk_bf16_f32 v13, v26, v27")
    for j in range(4):
        a(f"v_mfma_f32_16x16x32_bf16 {vr(48+4*j,4)}, a[{4*j}:{4*j+3}], v[8:11], 0")
    for j in range(4):
        a(f"v_mfma_f32_16x16x16_bf16 {vr(48+4*j,4)}, a[{16+2*j}:{17+2*j}], v[12:13], {vr(48+4*j,4)}")
    a(f"s_lshl_b32 s{sT0}, s47, 13"); a(f"s_add_u32 s{sT0}, s{sT0}, s46"); a(f"s_add_u32 s{sT0}, s{sT0}, {OBUF}")
    for kk in range(2):
        q0 = 48 + 8 * kk; d = 16 + 4 * kk
        for i in range(4): a(f"v_cvt_pk_bf16_f32 v{d+i}, v{q0+2*i}, v{q0+2*i+1}")
        a(f"buffer_store_dwordx4 {vr(d,4)}, v{vL16}, {Q(qWS)}, s{sT0} offen offset:{kk*1024}{sc_out}")
    a(f"s_add_u32 s{sS}, s{sS}, s{sSTR}")
    a(f"s_cmp_lt_u32 s{sS}, 64"); a(f"s_cbranch_scc1 {pfx}_loop")
    a("s_waitcnt vmcnt(0)")
    a("s_branch L_exit")

def bf_round(a, r):
    a(f"v_cvt_pk_bf16_f32 v{r}, v{r}, v{r}"); a(f"v_and_b32 v{r}, 0xffff0000, v{r}")

def sigmoid(a, r, sL):
    a(f"v_mul_f32 v{r}, s{sL}, v{r}"); a(f"v_exp_f32 v{r}, v{r}"); a(f"v_add_f32 v{r}, 1.0, v{r}"); a(f"v_rcp_f32 v{r}, v{r}")

def gen_WO(a, pfx, sc_in=""):
    a(f"s_load_dwordx2 s[4:5], s[0:1], {A_X}")
    a(f"s_load_dwordx2 s[6:7], s[0:1], {A_WO}")
    a(f"s_load_dwordx2 s[28:29], s[0:1], {WS}")
    a(f"s_load_dwordx2 s[30:31], s[0:1], {OUT}")
    lane_vars(a)
    a("s_waitcnt lgkmcnt(0)")
    srd(a, qX, 4, 2359296); srd(a, qW, 6, 4718592); srd(a, qWS, 28, WS_SIZE); srd(a, qOUT, 30, 2359296)
    a("v_lshrrev_b32 v8, 2, v1"); a("v_mul_u32_u24 v8, 1152, v8")
    a("v_and_b32 v9, 3, v1"); a("v_lshl_add_u32 v8, v9, 4, v8")
    a(f"s_mul_i32 s{sT2}, s{sW}, {1024*1152}"); a(f"s_lshl_b32 s{sT0}, s{sHD}, 6"); a(f"s_add_u32 s{sT2}, s{sT2}, s{sT0}")
    a(f"s_lshl_b32 s{sT3}, s{sW}, 15")
    a("v_lshrrev_b32 v9, 2, v2"); a("v_lshl_add_u32 v9, v3, 3, v9"); a("v_lshlrev_b32 v9, 6, v9")
    a("v_and_b32 v10, 3, v2"); a("v_lshl_or_b32 v9, v10, 4, v9"); a(f"v_add_u32 v9, s{sT3}, v9")
    for hf in range(2):
        for i in range(32):
            a(f"s_add_u32 m0, s{sT3}, {i*1024}")
            a(f"s_add_u32 s{sT0}, s{sT2}, {(hf*512 + i*16)*1152}")
            a(f"buffer_load_dwordx4 v8, {Q(qW)}, s{sT0} offen lds")
        a("s_waitcnt vmcnt(0)")
        for ks in range(16):
            for tau in range(2):
                b = ((hf * 16 + ks) * 2 + tau) * 4
                for x in range(2):
                    a(f"ds_read_b64_tr_b16 a[{b+2*x}:{b+2*x+1}], v9 offset:{ks*2048 + x*256 + tau*8}")
        a("s_waitcnt lgkmcnt(0)")
    a("s_barrier")
    vL16, vRW, vRR, vXO_, vROW = 5, 6, 7, 8, 9
    a(f"v_lshlrev_b32 v{vL16}, 4, v1")
    a(f"s_lshl_b32 s{sT0}, s{sW}, 12"); a(f"v_add_u32 v{vRW}, s{sT0}, v{vL16}")
    a(f"s_and_b32 s{sT0}, s{sW}, 1"); a(f"s_lshr_b32 s{sT1}, s{sW}, 1")
    a(f"s_lshl_b32 s{sT2}, s{sT0}, 1"); a(f"s_add_u32 s{sT2}, s{sT2}, s{sT1}"); a(f"s_lshl_b32 s{sT2}, s{sT2}, 10")
    a(f"v_add_u32 v{vRR}, s{sT2}, v{vL16}")
    a(f"s_lshl_b32 s{sT2}, s{sT0}, 4"); a(f"v_add_u32 v{vROW}, s{sT2}, v2")
    a(f"s_lshl_b32 s{sT2}, s{sHD}, 6"); a(f"s_lshl_b32 s{sT3}, s{sT1}, 3"); a(f"s_add_u32 s{sT2}, s{sT2}, s{sT3}")
    a("v_lshlrev_b32 v10, 4, v3"); a(f"v_add_u32 v10, s{sT2}, v10")
    a(f"v_mul_u32_u24 v{vXO_}, 1152, v{vROW}"); a(f"v_add_u32 v{vXO_}, v{vXO_}, v10")
    a("v_lshlrev_b32 v11, 2, v1")
    a(f"s_mov_b32 s{sT0}, {BROW}")
    a(f"buffer_load_dword v11, v11, {Q(qWS)}, s{sT0} offen{sc_in}")
    a("s_waitcnt vmcnt(0)")
    for j in range(8): a(f"v_readlane_b32 s{48+j}, v11, {j}")
    OW, NW = 64, 48
    a.lab(pfx + "_loop")
    a(f"s_lshl_b32 s{sT0}, s{sS}, 18"); a(f"s_lshl_b32 s{sT1}, s{sW}, 16"); a(f"s_add_u32 s46, s{sT0}, s{sT1}")
    a(f"s_add_u32 s46, s46, {OBUF}")
    a(f"s_lshl_b32 s{sT0}, s{sS}, 5"); a(f"v_add_u32 v12, s{sT0}, v{vROW}")
    a("v_lshlrev_b32 v13, 2, v12")
    a(f"s_mov_b32 s{sT1}, {RG + 8192}")
    a(f"buffer_load_dword v13, v13, {Q(qWS)}, s{sT1} offen{sc_in}")
    a(f"s_mul_i32 s47, s{sS}, {32*1152}")
    a(f"buffer_load_dwordx2 v[14:15], v{vXO_}, {Q(qX)}, s47 offen")
    a("v_mov_b32 v32, -1")
    for j in range(8):
        a(f"v_cmp_eq_u32 vcc, s{48+j}, v12"); a(f"v_mov_b32 v33, {j*1152}"); a("v_cndmask_b32 v32, v32, v33, vcc")
    a("v_cmp_ne_u32 s[56:57], -1, v32")
    a("v_add_u32 v33, v32, v10"); a("v_cndmask_b32 v33, v10, v33, s[56:57]")
    a(f"s_mov_b32 s{sT1}, {BROW + 64}")
    a(f"buffer_load_dwordx2 v[34:35], v33, {Q(qWS)}, s{sT1} offen{sc_in}")
    order = [(hh, rt, ks) for hh in range(8) for ks in range(4) for rt in range(2)]
    def ld(i):
        hh, rt, ks = order[i]
        if rt == 0 and ks == 0: pass
        a(f"s_add_u32 s{sT0}, s46, {hh*8192 + rt*4096}")
        a(f"buffer_load_dwordx4 {vr(OW + 4*(i % NW), 4)}, v{vL16}, {Q(qWS)}, s{sT0} offen offset:{ks*1024}{sc_in}")
    for i in range(NW): ld(i)
    for i, (hh, rt, ks) in enumerate(order):
        issued = min(64, NW + i)
        a(f"s_waitcnt vmcnt({issued - 1 - i})")
        for tau in range(2):
            acc = vr(16 + 4 * (rt * 2 + tau), 4); b = ((hh * 4 + ks) * 2 + tau) * 4
            a(f"v_mfma_f32_16x16x32_bf16 {acc}, a[{b}:{b+3}], {vr(OW + 4*(i % NW), 4)}, {acc if i >= 2 else 0}")
        if i + NW < 64: ld(i + NW)
    a("s_barrier")
    for q_ in range(4): a(f"ds_write_b128 v{vRW}, {vr(16+4*q_,4)} offset:{q_*1024}")
    a("s_waitcnt lgkmcnt(0)")
    a("s_barrier")
    for w_ in range(4): a(f"ds_read_b128 {vr(16+4*w_,4)}, v{vRR} offset:{w_*4096}")
    a("v_cndmask_b32 v14, v14, v34, s[56:57]"); a("v_cndmask_b32 v15, v15, v35, s[56:57]")
    a("v_sub_f32 v36, 1.0, v13"); bf_round(a, 36)
    a("v_lshlrev_b32 v40, 16, v14"); a("v_and_b32 v41, 0xffff0000, v14")
    a("v_lshlrev_b32 v42, 16, v15"); a("v_and_b32 v43, 0xffff0000, v15")
    for i in range(4):
        a(f"v_mul_f32 v{40+i}, v36, v{40+i}"); bf_round(a, 40 + i)
    a("s_waitcnt lgkmcnt(0)")
    for i in range(4):
        a(f"v_add_f32 v{16+i}, v{16+i}, v{20+i}"); a(f"v_add_f32 v{24+i}, v{24+i}, v{28+i}")
        a(f"v_add_f32 v{16+i}, v{16+i}, v{24+i}"); bf_round(a, 16 + i)
        a(f"v_mul_f32 v{16+i}, v13, v{16+i}"); bf_round(a, 16 + i)
        a(f"v_add_f32 v{16+i}, v{16+i}, v{40+i}")
    a("v_cvt_pk_bf16_f32 v44, v16, v17"); a("v_cvt_pk_bf16_f32 v45, v18, v19")
    a(f"buffer_store_dwordx2 v[44:45], v{vXO_}, {Q(qOUT)}, s47 offen")
    a(f"s_add_u32 s{sS}, s{sS}, s{sSTR}")
    a(f"s_cmp_lt_u32 s{sS}, 64"); a(f"s_cbranch_scc1 {pfx}_loop")
    a("s_waitcnt vmcnt(0)")
    a("s_branch L_exit")

def gen_RG(a, pfx, sc=""):
    a(f"s_load_dwordx2 s[4:5], s[0:1], {A_X}")
    a(f"s_load_dwordx2 s[6:7], s[0:1], {B_WR}")
    a(f"s_load_dwordx2 s[28:29], s[0:1], {WS}")
    a(f"s_load_dwordx2 s[30:31], s[0:1], {GATE}")
    lane_vars(a)
    a("s_waitcnt lgkmcnt(0)")
    srd(a, qX, 4, 2359296); srd(a, qW, 6, 1152); srd(a, qWS, 28, WS_SIZE); srd(a, qAUX, 30, 1152)
    a("v_lshlrev_b32 v5, 4, v3")
    a(f"s_lshl_b32 s{sT0}, s{sHD}, 6"); a(f"s_lshl_b32 s{sT1}, s{sW}, 4"); a(f"s_add_u32 s{sT0}, s{sT0}, s{sT1}")
    a(f"v_add_u32 v6, s{sT0}, v2")
    a("v_mul_u32_u24 v7, 1152, v6"); a("v_add_u32 v7, v7, v5")
    for ks in range(18):
        a(f"buffer_load_dwordx4 {vr(16+4*ks,4)}, v7, {Q(qX)}, 0 offen offset:{ks*64}")
        a(f"buffer_load_dwordx4 {vr(88+4*ks,4)}, v5, {Q(qW)}, 0 offen offset:{ks*64}")
        a(f"buffer_load_dwordx4 {vr(160+4*ks,4)}, v5, {Q(qAUX)}, 0 offen offset:{ks*64}")
    a("s_waitcnt vmcnt(0)")
    for ks in range(18):
        a(f"v_mfma_f32_16x16x32_bf16 v[8:11], {vr(88+4*ks,4)}, {vr(16+4*ks,4)}, {'v[8:11]' if ks else 0}")
        a(f"v_mfma_f32_16x16x32_bf16 v[12:15], {vr(160+4*ks,4)}, {vr(16+4*ks,4)}, {'v[12:15]' if ks else 0}")
    a(f"s_mov_b32 s{sT2}, {f32bits(-math.log2(math.e)):#x}")
    bf_round(a, 8); bf_round(a, 12); sigmoid(a, 12, sT2); bf_round(a, 12)
    a("v_lshlrev_b32 v6, 2, v6")
    a("s_mov_b64 exec, 0xffff")
    a(f"s_mov_b32 s{sT0}, {RG}"); a(f"s_mov_b32 s{sT1}, {RG + 8192}")
    a(f"buffer_store_dword v8, v6, {Q(qWS)}, s{sT0} offen{sc}")
    a(f"buffer_store_dword v12, v6, {Q(qWS)}, s{sT1} offen{sc}")
    a("s_mov_b64 exec, -1")
    a("s_waitcnt vmcnt(0)")

def top8(a, sc_in=""):
    a("v_lshlrev_b32 v8, 4, v1")
    a(f"s_mov_b32 s{sT0}, {RG}"); a(f"s_mov_b32 s{sT1}, {RG + 4096}")
    for j in range(8):
        a(f"buffer_load_dwordx4 {vr(16+4*j,4)}, v8, {Q(qWS)}, s{(sT0, sT1)[j>>2]} offen offset:{(j&3)*1024}{sc_in}")
    a("v_lshlrev_b32 v9, 2, v1"); a("v_sub_u32 v9, 2047, v9")
    a("s_waitcnt vmcnt(0)")
    for j in range(32):
        r = 16 + j
        a(f"v_ashrrev_i32 v10, 31, v{r}"); a("v_or_b32 v10, 0x80000000, v10")
        a(f"v_xor_b32 v{r}, v{r}, v10"); a(f"v_and_b32 v{r}, 0xffff0000, v{r}")
        a(f"v_subrev_u32 v10, {(j >> 2) * 256 + (j & 3)}, v9"); a(f"v_or_b32 v{r}, v{r}, v10")
    for k in range(8):
        a("v_max3_u32 v48, v16, v17, v18")
        for i in range(19, 47, 2): a(f"v_max3_u32 v48, v48, v{i}, v{i+1}")
        a("v_max_u32 v48, v48, v47")
        for mod in ("quad_perm:[1,0,3,2]", "quad_perm:[2,3,0,1]", "row_half_mirror", "row_mirror"):
            a(f"v_max_u32_dpp v48, v48, v48 {mod} row_mask:0xf bank_mask:0xf")
        for sw in ("16", "32"):
            a("v_mov_b32 v49, v48"); a(f"v_permlane{sw}_swap_b32 v49, v48"); a("v_max_u32 v48, v49, v48")
        a(f"v_readfirstlane_b32 s{48+k}, v48")
        if k < 7:
            for j in range(32):
                a(f"v_cmp_ne_u32 vcc, v48, v{16+j}"); a(f"v_cndmask_b32 v{16+j}, 0, v{16+j}, vcc")

def rows_from_keys(a, vdst):
    a(f"v_mov_b32 v{vdst}, s48")
    a("v_and_b32 v10, 7, v2")
    for j in range(1, 8):
        a(f"v_cmp_eq_u32 vcc, {j}, v10"); a(f"v_mov_b32 v11, s{48+j}"); a(f"v_cndmask_b32 v{vdst}, v{vdst}, v11, vcc")

def gen_FFN(a, pfx, sc_in="", sc_out=""):
    a(f"s_load_dwordx2 s[4:5], s[0:1], {A_X}")
    a(f"s_load_dwordx4 s[28:31], s[0:1], {B_WG}")
    a(f"s_load_dwordx2 s[6:7], s[0:1], {B_WD}")
    a(f"s_load_dwordx2 s[32:33], s[0:1], {WS}")
    lane_vars(a)
    a("s_waitcnt lgkmcnt(0)")
    srd(a, qX, 4, 2359296); srd(a, qW, 28, 5308416); srd(a, qAUX, 30, 5308416); srd(a, qOUT, 6, 5308416); srd(a, qWS, 32, WS_SIZE)
    a(f"s_lshl_b32 s46, s{sHD}, 8")
    load_w128(a, qW, 9216, 46, True, lambda tau, ks: ("a", (ks * 2 + tau) * 4))
    load_w128(a, qAUX, 9216, 46, True, lambda tau, ks: ("v", 112 + (ks * 2 + tau) * 4))
    a(f"s_mul_i32 s46, s{sHD}, {128*1152}")
    a(f"s_lshl_b32 s{sT2}, s{sW}, 10")
    for i in range(36):
        a(f"s_add_u32 m0, s{sT2}, {i*4096}")
        a(f"s_add_u32 s{sT0}, s46, {i*4096}")
        a(f"buffer_load_dwordx4 v4, {Q(qOUT)}, s{sT0} offen lds")
    top8(a, sc_in)
    rows_from_keys(a, 5)
    a("v_and_b32 v5, 0xffff, v5"); a("v_sub_u32 v5, 2047, v5")
    a("v_mul_u32_u24 v5, 1152, v5"); a("v_lshl_add_u32 v5, v3, 4, v5")
    for ks in range(18): a(f"buffer_load_dwordx4 {vr(32+4*ks,4)}, v5, {Q(qX)}, 0 offen offset:{ks*64}")
    a("s_waitcnt vmcnt(0)")
    for ks in range(18):
        for tau in range(2):
            b = (ks * 2 + tau) * 4
            a(f"v_mfma_f32_16x16x32_bf16 {vr(16+4*tau,4)}, a[{b}:{b+3}], {vr(32+4*ks,4)}, {vr(16+4*tau,4) if ks else 0}")
            a(f"v_mfma_f32_16x16x32_bf16 {vr(24+4*tau,4)}, {vr(112+b,4)}, {vr(32+4*ks,4)}, {vr(24+4*tau,4) if ks else 0}")
    a(f"s_mov_b32 s{sT2}, {f32bits(-math.log2(math.e)):#x}")
    for i in range(8):
        bf_round(a, 16 + i); bf_round(a, 24 + i)
        a(f"v_mov_b32 v8, v{16+i}"); sigmoid(a, 8, sT2)
        a(f"v_mul_f32 v{16+i}, v{16+i}, v8"); bf_round(a, 16 + i)
        a(f"v_mul_f32 v{16+i}, v{16+i}, v{24+i}")
    for i in range(4): a(f"v_cvt_pk_bf16_f32 v{8+i}, v{16+2*i}, v{17+2*i}")
    HL = 147456
    a(f"v_add_u32 v6, {HL}, v4")
    a("ds_write_b128 v6, v[8:11]")
    a("s_waitcnt lgkmcnt(0)")
    a("s_barrier")
    a("v_lshlrev_b32 v6, 4, v1"); a(f"v_add_u32 v6, {HL}, v6")
    for ks in range(4): a(f"ds_read_b128 {vr(16+4*ks,4)}, v6 offset:{ks*1024}")
    a("v_lshrrev_b32 v7, 2, v2"); a("v_lshl_add_u32 v7, v3, 3, v7"); a("v_mul_u32_u24 v7, 1152, v7")
    a("v_and_b32 v8, 3, v2"); a("v_lshl_add_u32 v7, v8, 3, v7")
    a(f"s_mul_i32 s{sT0}, s{sW}, 288"); a(f"v_add_u32 v7, s{sT0}, v7")
    for ks in range(1, 4): a(f"v_add_u32 v{11+ks}, {ks*32*1152}, v7")
    for t in range(9):
        for ks in range(4):
            for x in range(2):
                b = 112 + (t * 4 + ks) * 4 + 2 * x
                a(f"ds_read_b64_tr_b16 {vr(b,2)}, v{7 if ks == 0 else 11+ks} offset:{x*4*1152 + t*32}")
    a("s_waitcnt lgkmcnt(0)")
    for t in range(9):
        for ks in range(4):
            a(f"v_mfma_f32_16x16x32_bf16 {vr(32+4*t,4)}, {vr(112+(t*4+ks)*4,4)}, {vr(16+4*ks,4)}, {vr(32+4*t,4) if ks else 0}")
    a("v_mul_u32_u24 v6, 2304, v2"); a("v_lshl_add_u32 v6, v3, 4, v6")
    a(f"s_mul_i32 s{sT0}, s{sHD}, 18432"); a(f"s_mul_i32 s{sT1}, s{sW}, 576"); a(f"s_add_u32 s{sT0}, s{sT0}, s{sT1}")
    a(f"s_add_u32 s{sT0}, s{sT0}, {YP}")
    a("v_cmp_gt_u32 vcc, 8, v2")
    a("s_mov_b64 exec, vcc")
    for t in range(9): a(f"buffer_store_dwordx4 {vr(32+4*t,4)}, v6, {Q(qWS)}, s{sT0} offen offset:{t*64}{sc_out}")
    a("s_mov_b64 exec, -1")
    a("s_waitcnt vmcnt(0)")

def gen_YS(a, pfx, sc_in="", sc_out=""):
    a(f"s_load_dwordx2 s[4:5], s[0:1], {A_X}")
    a(f"s_load_dwordx2 s[28:29], s[0:1], {WS}")
    lane_vars(a)
    a("s_waitcnt lgkmcnt(0)")
    srd(a, qX, 4, 2359296); srd(a, qWS, 28, WS_SIZE)
    a(f"s_mul_i32 s46, s{sHD}, 2304"); a(f"s_add_u32 s46, s46, {YP}")
    a("v_min_u32 v5, 143, v0"); a("v_lshlrev_b32 v6, 4, v5")
    for j in range(36):
        a(f"s_add_u32 s{sT0}, s46, {j*18432}")
        a(f"buffer_load_dwordx4 {vr(64+4*j,4)}, v6, {Q(qWS)}, s{sT0} offen{sc_in}")
    top8(a, sc_in)
    a("s_mov_b32 s47, s48")
    for j in range(1, 8):
        a(f"s_cmp_eq_u32 s{sHD}, {j}"); a(f"s_cselect_b32 s47, s{48+j}, s47")
    a(f"s_and_b32 s{sT0}, s47, 0xffff"); a(f"s_sub_u32 s{sT3}, 2047, s{sT0}")
    a(f"s_mul_i32 s{sT0}, s{sT3}, 1152")
    a("v_lshlrev_b32 v7, 3, v5")
    a(f"buffer_load_dwordx2 v[8:9], v7, {Q(qX)}, s{sT0} offen")
    a(f"s_lshl_b32 s{sT1}, s{sT3}, 2"); a(f"s_add_u32 s{sT1}, s{sT1}, {RG}")
    a("v_mov_b32 v10, 0")
    a(f"buffer_load_dword v10, v10, {Q(qWS)}, s{sT1} offen{sc_in}")
    for j in range(1, 36):
        for i in range(4): a(f"v_add_f32 v{64+i}, v{64+i}, v{64+4*j+i}")
    a("s_waitcnt vmcnt(0)")
    a(f"s_mov_b32 s{sT2}, {f32bits(-math.log2(math.e)):#x}")
    sigmoid(a, 10, sT2); bf_round(a, 10)
    a("v_lshlrev_b32 v12, 16, v8"); a("v_and_b32 v13, 0xffff0000, v8")
    a("v_lshlrev_b32 v14, 16, v9"); a("v_and_b32 v15, 0xffff0000, v9")
    for i in range(4):
        bf_round(a, 64 + i); a(f"v_mul_f32 v{64+i}, v{64+i}, v10"); bf_round(a, 64 + i)
        a(f"v_add_f32 v{64+i}, v{64+i}, v{12+i}")
    a("v_cvt_pk_bf16_f32 v8, v64, v65"); a("v_cvt_pk_bf16_f32 v9, v66, v67")
    a(f"s_mul_i32 s{sT0}, s{sHD}, 1152"); a(f"s_add_u32 s{sT0}, s{sT0}, {BROW + 64}")
    a(f"buffer_store_dwordx2 v[8:9], v7, {Q(qWS)}, s{sT0} offen{sc_out}")
    a(f"v_mov_b32 v10, s{sT3}"); a("v_mov_b32 v11, 0")
    a(f"s_lshl_b32 s{sT0}, s{sHD}, 2"); a(f"s_add_u32 s{sT0}, s{sT0}, {BROW}")
    a(f"buffer_store_dword v10, v11, {Q(qWS)}, s{sT0} offen{sc_out}")
    a("s_waitcnt vmcnt(0)")
```

```python
WS_SIZE = 0x10000000
KVX  = 0x0000000
OBUF = 0x2000000
KVM  = 0x3000000
MEMS = 0x3800000
PART = 0x3900000
RG   = 0x3A00000
YP   = 0x3A10000
TS   = 0x3C00000
A_X, A_MEM0, A_WQ, A_WK, A_WV, A_WO, A_SEG, B_X, B_WR, B_WG, B_WU, B_WD, GATE, OUT, DBG, WS = [8 * i for i in range(16)]
BROW = 0x3B00000
FLG  = 0x3B10000
D_RT, D_RDY, D_INIT, D_WT, D_RG, D_FFN, D_YS = 0, 4, 8, 128, 132, 136, 140
```

```python
import sys, re
from asmlib import *
from layout import *
import gen_r, gen_w
from gen_w import *
NAME = "gated_mix__memory_aug_recurrent_mem_tr__moe_arch_mod__prompt"
opts = dict(d1=16, d2=12)
for x in sys.argv[2:]:
    k, v = x.split("="); opts[k] = int(v)

def finish(a, tag):
    a.lab("L_exit"); a("s_endpgm")
    return re.sub(r"\bL_(exit|worker)\b", lambda m: f"L_{m.group(1)}_{tag}", a.finalize())

kernels = []
a = Asm()
a("s_cmp_ge_u32 s2, 256"); a("s_cbranch_scc1 L_exit")
a("s_cmp_ge_u32 s2, 32"); a("s_cbranch_scc1 K1_go")
a(f"s_mov_b32 s{sHD}, s2")
gen_RG(a, "RG")
a.lab("K1_go")
a(f"s_and_b32 s{sHD}, s2, 31"); a(f"s_lshr_b32 s{sS}, s2, 6"); a(f"s_mov_b32 s{sSTR}, 4")
a("s_bitcmp1_b32 s2, 5"); a("s_cbranch_scc1 K1_v")
gen_P(a, True, "PK")
a.lab("K1_v")
gen_P(a, False, "PV")
kernels.append(("proj_kernel", finish(a, "k1"), 256, 256, 147456))
a = Asm()
gen_r.gen_roles(a)
gen_r.gen_R(a, d1=opts["d1"], d2=opts["d2"])
a.lab("L_worker")
a(f"s_sub_u32 s{sHD}, s{gen_r.sH}, 32")
a(f"s_cmp_ge_u32 s{sHD}, 36"); a("s_cbranch_scc1 L_exit")
gen_FFN(a, "FF")
kernels.append(("rec_kernel", finish(a, "k2"), 512, 256, 163840))
a = Asm()
a("s_cmp_ge_u32 s2, 256"); a("s_cbranch_scc1 L_exit")
a("s_cmp_ge_u32 s2, 8"); a("s_cbranch_scc1 K3_go")
a(f"s_mov_b32 s{sHD}, s2")
gen_YS(a, "YS")
a.lab("K3_go")
a(f"s_and_b32 s{sHD}, s2, 31"); a(f"s_lshr_b32 s{sS}, s2, 5"); a(f"s_mov_b32 s{sSTR}, 8")
gen_QA(a, "QA")
kernels.append(("attn_kernel", finish(a, "k3"), 296, 256, 147456))
a = Asm()
a("s_cmp_ge_u32 s2, 252"); a("s_cbranch_scc1 L_exit")
a("s_mul_i32 s3, s2, 3641"); a(f"s_lshr_b32 s{sS}, s3, 16")
a(f"s_mul_i32 s3, s{sS}, 18"); a(f"s_sub_u32 s{sHD}, s2, s3"); a(f"s_mov_b32 s{sSTR}, 14")
gen_WO(a, "WO")
kernels.append(("out_kernel", finish(a, "k4"), 512, 252, 131072))

hdr = open("cdna_kernels/" + NAME + ".s.ref").read().split("; Override launch")[0]
s = hdr
for n, _, _, g, lds in kernels: s += f"; @launch kernel={n} grid=({g},1,1) block=(256,1,1) lds={lds}\n"
s += '.amdgcn_target "amdgcn-amd-amdhsa--gfx950"\n.text\n'
for n, body, _, _, _ in kernels: s += kernel_header(n) + body
s += '.section .rodata,"a"\n'
for n, _, v, _, _ in kernels: s += kernel_desc(n, v, accum=256)
open(sys.argv[1], "w").write(s)
```

```python
from asmlib import *
from layout import *
import re

class Cnt:
    def __init__(self, a, name, maxn):
        self.a = a; self.name = name; self.maxn = maxn; self.q = []
    def issue(self, tag): self.q.append(tag)
    def wait(self, tag):
        idx = max(i for i, t in enumerate(self.q) if t == tag)
        n = len(self.q) - 1 - idx
        self.a(f"s_waitcnt {self.name}({min(n, self.maxn)})")
        self.q = self.q[idx + 1:] if n <= self.maxn else self.q[-self.maxn:]
    def wait_all(self):
        self.a(f"s_waitcnt {self.name}(0)"); self.q = []

def vr(b, n): return f"v[{b}:{b+n-1}]"

def srd(a, d, lo, size):
    a(f"s_mov_b32 s{d}, s{lo}")
    a(f"s_and_b32 s{d+1}, s{lo+1}, 0xffff")
    a(f"s_mov_b32 s{d+2}, {size:#x}")
    a(f"s_mov_b32 s{d+3}, 0x20000")

vIDX, vMS, vM1, vM2, vM3, vWA0, vWA1, vXq, vXk, vXR, vXO, vJ = range(12)
F = [12, 16, 20, 24, 28, 32]
AQ0, AQ1, AK0, AK1 = 36, 40, 44, 48
ST = 52
KX0, KX1 = 68, 72
E = 76
sWS, sWQ, sWK, sWV, sWO, sM0, sDB = 8, 12, 16, 20, 24, 28, 32
sW, sH, sS, sTAG = 36, 37, 38, 39
mP, mN6, mL18, mS0, mS1, mS2, mODD = 40, 42, 44, 46, 48, 50, 52
sKV0, sKV1, sKV2, sKV3 = 54, 55, 56, 57
sKVM, sPSo, sPLo, sMOo, sMI0, sMI1, sMI2, sARM, sPF = 58, 59, 60, 61, 62, 63, 64, 65, 66
sC = 68
sT0, sT1, sT2, sT3 = 70, 71, 72, 73
sSPIN = 74
sTS = 76
mLO = 96
sONE = 98
sMOb, sMIb, sARb = 100, 101, 67
SLOT = 16384
RXCD = 0
sFL, sKVP, sFR = 4, 5, 6

CH = lambda j: 16384 * (j + 1)
RES = [("q", 0), ("k", 0), ("q", 3), ("q", 7), ("k", 2), ("k", 3), ("k", 8), ("o", 1), ("o", 8)]
ALLCH = [(m, p) for m in "qkv" for p in range(9)] + [("o", t) for t in range(9)]
REGCH = [c for c in ALLCH if c not in RES]
assert len(REGCH) == 27
WREG = {}
_n = 0
for c in REGCH:
    for tau in range(2):
        if _n < 22: WREG[c + (tau,)] = ("v", 80 + 8 * _n)
        else: WREG[c + (tau,)] = ("a", 8 * (_n - 22))
        _n += 1
def wr(c, tau):
    f, b = WREG[c + (tau,)]; return f"{f}[{b}:{b+7}]"

def gen_R(a, tstamp=False, sc_out="", nsteps=64, d1=0, d2=0, pf=2, nocomm=0, noexp=0, g1=0, g2=0, dw=0, two1=0, two2=0, sync=False, forceg=0):
    lg = Cnt(a, "lgkmcnt", 15); vm = Cnt(a, "vmcnt", 63)
    tsn = [0]
    def ts():
        if tstamp == 1 or (tstamp in (2, 4) and tsn[0] in (0, 6, 8)):
            a(f"s_memtime s[{sTS+2*tsn[0]}:{sTS+2*tsn[0]+1}]")
        tsn[0] += 1
    def tc(i):
        if tstamp == 2: a(f"s_memtime s[{sTS+2*i}:{sTS+2*i+1}]")
    a(f"s_load_dwordx4 s[76:79], s[0:1], {A_MEM0}")
    a(f"s_load_dwordx4 s[80:83], s[0:1], {A_WK}")
    a(f"s_load_dwordx2 s[84:85], s[0:1], {A_WO}")
    a(f"s_load_dwordx4 s[88:91], s[0:1], {DBG}")
    a("v_lshrrev_b32 v12, 6, v0")
    a("v_and_b32 v13, 63, v0")
    a(f"v_readfirstlane_b32 s{sW}, v12")
    a("v_and_b32 v14, 15, v13")
    a("v_lshrrev_b32 v15, 4, v13")
    a("s_waitcnt lgkmcnt(0)")
    srd(a, sM0, 76, 9216); srd(a, sWQ, 78, 4718592); srd(a, sWK, 80, 4718592); srd(a, sWV, 82, 4718592)
    srd(a, sWO, 84, 4718592); srd(a, sDB, 88, 256); srd(a, sWS, 90, WS_SIZE)
    L, C, G = 13, 14, 15
    a(f"v_lshlrev_b32 v{vMS}, 4, v0")
    for k, r in ((1, vM1), (2, vM2), (3, vM3)): a(f"v_xor_b32 v{r}, {k<<10:#x}, v{vMS}")
    a(f"v_and_b32 v16, 2, v{L}"); a(f"v_cmp_ne_u32 s[{mP}:{mP+1}], 0, v16")
    a(f"v_cmp_gt_u32 s[{mN6}:{mN6+1}], 6, v{C}")
    a(f"v_cmp_gt_u32 s[{mL18}:{mL18+1}], 18, v{L}")
    a(f"v_lshrrev_b32 v16, 1, v{C}")
    for k, m in enumerate((mS0, mS1, mS2)): a(f"v_cmp_eq_u32 s[{m}:{m+1}], {k}, v16")
    a(f"v_and_b32 v16, 1, v{L}"); a(f"v_cmp_ne_u32 s[{mODD}:{mODD+1}], 0, v16")
    def pv(p):
        x = 0xE if p else 0x4; val = 0x5 if p else 0x4
        return x | val << 4 | x << 8 | val << 12
    a(f"v_cmp_gt_u32 s[{mLO}:{mLO+1}], 32, v{L}")
    a(f"v_mov_b32 v16, {(pv(0) << 16) | 0x4444:#x}"); a(f"v_mov_b32 v18, {(pv(1) << 16) | 0xEEEE:#x}")
    a(f"v_cndmask_b32 v{vIDX}, v16, v18, s[{mP}:{mP+1}]")
    R, CC = 16, 17
    a(f"v_lshrrev_b32 v{R}, 2, v{C}"); a(f"v_and_b32 v{CC}, 3, v{C}")
    a(f"v_lshrrev_b32 v18, 1, v{G}")
    a(f"v_and_b32 v19, 1, v{G}")
    a(f"v_lshrrev_b32 v20, 1, v{R}")
    a(f"v_and_b32 v21, 1, v{R}")
    a("v_lshl_or_b32 v22, v18, 4, v21")
    a("v_lshl_or_b32 v22, v19, 2, v22")
    a("v_lshl_or_b32 v22, v20, 3, v22")
    a("v_lshl_or_b32 v23, v19, 1, v21")
    a("v_lshl_or_b32 v23, v20, 2, v23")
    a(f"s_lshl_b32 s{sT0}, s{sW}, 1")
    a(f"v_xor_b32 v23, s{sT0}, v23")
    a("v_lshlrev_b32 v22, 8, v22")
    a("v_lshl_or_b32 v22, v23, 5, v22")
    a(f"v_lshl_or_b32 v22, v{CC}, 3, v22")
    a(f"v_add_u32 v{vWA0}, 0x4000, v22")
    a(f"v_xor_b32 v{vWA1}, 32, v{vWA0}")
    a(f"v_lshlrev_b32 v22, 3, v{C}")
    a("v_lshl_or_b32 v22, v19, 7, v22")
    a(f"v_lshl_or_b32 v{vXR}, v18, 10, v22")
    a("v_lshl_or_b32 v22, v18, 9, v22")
    a(f"s_lshl_b32 s{sT0}, s{sW}, 10")
    a(f"v_or_b32 v{vXO}, s{sT0}, v22")
    a(f"v_lshlrev_b32 v22, 5, v{CC}")
    a("v_lshl_or_b32 v22, v21, 8, v22")
    a("v_lshl_or_b32 v22, v20, 7, v22")
    a(f"v_or_b32 v22, s{sT0}, v22")
    a(f"v_lshl_or_b32 v{vXq}, v{G}, 3, v22")
    a("v_lshl_or_b32 v22, v18, 3, v22")
    a(f"v_lshl_or_b32 v{vXk}, v19, 4, v22")
    a(f"s_lshl_b32 s{sT0}, s{sW}, 15"); a(f"s_lshl_b32 s{sT1}, s{sH}, 7")
    a(f"s_add_u32 s{sPSo}, s{sT0}, s{sT1}"); a(f"s_add_u32 s{sPSo}, s{sPSo}, {PART:#x}")
    a(f"s_lshl_b32 s{sT0}, s{sW}, 5"); a(f"s_add_u32 s{sT0}, s{sT0}, s{sH}"); a(f"s_lshl_b32 s{sT0}, s{sT0}, 12")
    a(f"s_lshl_b32 s{sT1}, s{sW}, 10"); a(f"s_sub_u32 s{sT0}, s{sT0}, s{sT1}")
    a(f"s_add_u32 s{sPLo}, s{sT0}, {PART:#x}")
    a(f"s_mul_i32 s{sT0}, s{sW}, 3072"); a(f"s_lshl_b32 s{sT2}, s{sH}, 5"); a(f"s_add_u32 s{sT0}, s{sT0}, s{sT2}")
    a(f"s_add_u32 s{sMOb}, s{sT0}, {MEMS:#x}")
    a(f"s_mov_b32 s{sMIb}, {MEMS + 8192:#x}")
    a(f"s_mul_i32 s{sT0}, s{sH}, 288"); a(f"s_add_u32 s{sARb}, s{sT0}, {MEMS - 3072:#x}")
    a(f"s_add_u32 s{sARM}, s{sARb}, {SLOT}")
    a(f"s_lshl_b32 s{sT0}, s{sH}, 14"); a(f"s_add_u32 s{sKV0}, s{sT0}, {KVX:#x}")
    a(f"s_add_u32 s{sKV1}, s{sKV0}, 4096"); a(f"s_add_u32 s{sKV2}, s{sKV0}, 8192"); a(f"s_add_u32 s{sKV3}, s{sKV0}, 12288")
    pass
    a(f"s_lshl_b32 s{sT0}, s{sH}, 12"); a(f"s_add_u32 s{sKVM}, s{sT0}, {KVM:#x}")
    import struct, math
    cbits = struct.unpack("<I", struct.pack("<f", (128 ** -0.5) * math.log2(math.e)))[0]
    a(f"s_mov_b32 s{sC}, {cbits:#x}"); a(f"s_mov_b32 s{sC+1}, {cbits:#x}")
    a(f"s_mov_b32 s{sSPIN}, 0")
    a("v_mov_b64 v[24:25], 0"); a("v_mov_b64 v[26:27], 0")
    a(f"s_cmp_eq_u32 s{sW}, 3"); a("s_cbranch_scc1 R_init3")
    for j in range(4): a(f"buffer_store_dwordx4 v[24:27], v{vMS}, s[{sWS}:{sWS+3}], s{sPLo} offen offset:{1024*j} sc1")
    a("s_branch R_init_done")
    a.lab("R_init3")
    a("v_mov_b64 v[24:25], -1"); a("v_mov_b64 v[26:27], -1")
    a(f"s_mov_b64 exec, s[{mL18}:{mL18+1}]")
    a(f"buffer_store_dwordx4 v[24:27], v{vMS}, s[{sWS}:{sWS+3}], s{sARM} offen sc1")
    a(f"s_add_u32 s{sARM}, s{sARM}, {SLOT}")
    a(f"buffer_store_dwordx4 v[24:27], v{vMS}, s[{sWS}:{sWS+3}], s{sARM} offen sc1")
    a("s_mov_b64 exec, -1")
    a.lab("R_init_done")
    a("s_waitcnt vmcnt(0)")
    a("s_barrier")
    a(f"v_cmp_eq_u32 vcc, 0, v{vMS}")
    a(f"s_and_saveexec_b64 s[{sT0}:{sT1}], vcc")
    a("s_cbranch_execz R_init_sig")
    a("v_mov_b32 v24, s7")
    a(f"buffer_atomic_add v24, off, s[{sDB}:{sDB+3}], 0 offset:{D_RDY}")
    a.lab("R_init_sig")
    a("s_mov_b64 exec, -1")
    a(f"s_lshl_b32 s{sT0}, s{sW}, 2")
    a("v_lshlrev_b32 v22, 1, v19")
    a(f"v_or_b32 v22, s{sT0}, v22")
    a(f"v_xor_b32 v22, v22, v{C}")
    a("v_lshrrev_b32 v23, 2, v22")
    a(f"v_add_u32 v24, s{sT0}, v{G}")
    a("v_lshlrev_b32 v24, 13, v24")
    a("v_lshl_or_b32 v32, v22, 4, v24")
    for k in range(4):
        a(f"v_xor_b32 v24, {k}, v23")
        a(f"v_lshl_or_b32 v{28+k}, v24, 19, v32")
    a(f"s_lshr_b32 s{sT0}, s{sW}, 1"); a(f"s_lshl_b32 s{sT0}, s{sT0}, 4")
    a(f"s_and_b32 s{sT1}, s{sW}, 1"); a(f"s_lshl_b32 s{sT1}, s{sT1}, 2"); a(f"s_add_u32 s{sT0}, s{sT0}, s{sT1}")
    a("v_bfe_u32 v24, v22, 1, 1")
    a(f"v_lshl_add_u32 v24, v24, 6, v{G}")
    a(f"v_add_u32 v24, s{sT0}, v24")
    a("v_mul_u32_u24 v24, 1152, v24")
    a("v_lshl_add_u32 v24, v23, 5, v24")
    a("v_and_b32 v25, 1, v22")
    a("v_lshl_add_u32 v33, v25, 4, v24")
    a(f"s_lshl_b32 s{sT2}, s{sH}, 8")
    a(f"s_mul_i32 s{sT3}, s{sH}, 147456")
    a(f"s_lshl_b32 s75, s{sW}, 10")
    def dma(ch, slot):
        m_, p = ch
        for m in range(4):
            a(f"s_add_u32 m0, s75, {CH(slot) + m*4096:#x}")
            if m_ == "o":
                a(f"s_add_u32 s{sT0}, s{sT3}, {(32*(m>>1) + 8*(m&1))*1152 + p*128:#x}")
                a(f"buffer_load_dwordx4 v33, s[{sWO}:{sWO+3}], s{sT0} offen lds")
            else:
                sr = {"q": sWQ, "k": sWK, "v": sWV}[m_]
                if p == 2: vo, fb = 32, 8
                elif p < 2: vo, fb = 28, 4 * p
                else: vo, fb = 28 + (p - 3) % 3 + 1, 4 * ((p - 3) // 3)
                a(f"s_add_u32 s{sT0}, s{sT2}, {fb*524288 + m*16*8192:#x}")
                a(f"buffer_load_dwordx4 v{vo}, s[{sr}:{sr+3}], s{sT0} offen lds")
    def trd(dst_f, dst_b, tau, off, tag=None, a0=vWA0, a1=vWA1):
        for jj in range(4):
            o = off + (32 * (jj >> 1) + 2 * (jj & 1)) * 256
            assert o < 65536
            a(f"ds_read_b64_tr_b16 {dst_f}[{dst_b+2*jj}:{dst_b+2*jj+1}], v{a1 if tau else a0} offset:{o}")
            if tag: lg.issue(tag)
    for gi in range(3):
        a(f"v_add_u32 v{34+2*gi}, {gi*49152:#x}, v{vWA0}"); a(f"v_add_u32 v{35+2*gi}, {gi*49152:#x}, v{vWA1}")
    order = REGCH + RES
    for gi in range(3):
        for j in range(3): dma(order[3*gi + j], 3*gi + j)
    for gi in range(9):
        a("s_waitcnt vmcnt(24)")
        a("s_barrier")
        sg = gi % 3
        for j in range(3):
            ch = order[3*gi + j]
            for tau in range(2):
                f, b = WREG[ch + (tau,)]
                trd(f, b, tau, j * 16384, a0=34 + 2*sg, a1=35 + 2*sg)
        a("s_waitcnt lgkmcnt(0)")
        a("s_barrier")
        for j in range(3): dma(order[3*(gi+3) + j], 3*sg + j)
    a("s_waitcnt vmcnt(0)")
    a("s_barrier")
    a(f"v_add_u32 v41, 0x10000, v{vMS}"); a(f"v_add_u32 v42, 0x20000, v{vMS}")
    for j in range(9):
        sg = j // 3
        for tau in range(2): trd("v", 44 + 8 * tau, tau, (j % 3) * 16384, a0=34 + 2*sg, a1=35 + 2*sg)
        a("s_waitcnt lgkmcnt(0)")
        a("s_barrier")
        for q_ in range(4):
            off = CH(j) + q_ * 4096
            a(f"ds_write_b128 v{(vMS, 41, 42)[off >> 16]}, {vr(44 + 4*q_, 4)} offset:{off & 0xffff}")
    a(f"v_mov_b32 v{vWA0}, v41"); a(f"v_mov_b32 v{vWA1}, v42")
    a("s_waitcnt lgkmcnt(0)")
    a(f"v_and_b32 v22, 1, v{C}")
    a(f"v_lshl_or_b32 v22, v{R}, 1, v22")
    a("v_mul_u32_u24 v22, 1152, v22")
    a(f"v_lshl_add_u32 v22, v{G}, 5, v22")
    a(f"v_and_b32 v23, 2, v{C}")
    a("v_lshl_add_u32 v40, v23, 3, v22")
    a(f"v_bfe_u32 v22, v{L}, 2, 1")
    a(f"v_lshl_or_b32 v22, v{G}, 1, v22")
    a("v_mul_u32_u24 v22, 1152, v22")
    a(f"v_bfe_u32 v23, v{L}, 3, 1")
    a("v_lshl_add_u32 v22, v23, 4, v22")
    a(f"v_lshl_add_u32 v43, v{CC}, 2, v22")
    a(f"s_lshl_b32 s{sT0}, s{sW}, 7"); a(f"s_lshl_b32 s{sT1}, s{sW}, 5")
    a(f"buffer_load_dwordx4 {vr(F[0],4)}, v40, s[{sM0}:{sM0+3}], s{sT0} offen")
    a(f"buffer_load_dwordx4 {vr(F[1],4)}, v40, s[{sM0}:{sM0+3}], s{sT0} offen offset:512")
    a(f"buffer_load_dword v{E+1}, v43, s[{sM0}:{sM0+3}], s{sT1} offen offset:1024")
    a.lab("R_ready")
    a(f"buffer_load_dword v42, off, s[{sDB}:{sDB+3}], 0 offset:{D_RDY} sc1")
    a(f"s_add_u32 s{sSPIN}, s{sSPIN}, 1")
    a(f"s_cmp_gt_u32 s{sSPIN}, 0x100000"); a("s_cbranch_scc1 L_exit")
    a("s_waitcnt vmcnt(0)")
    a("v_readfirstlane_b32 s7, v42")
    a(f"s_and_b32 s{sT0}, s7, 0xffff")
    a(f"s_cmp_lt_u32 s{sT0}, 32"); a("s_cbranch_scc1 R_ready")
    def kv_wait(lab, target):
        a.lab(lab)
        a(f"buffer_load_dword v{vJ}, off, s[{sWS}:{sWS+3}], s{sFL} sc1")
        a(f"s_add_u32 s{sSPIN}, s{sSPIN}, 1")
        a(f"s_cmp_gt_u32 s{sSPIN}, 0x400000"); a("s_cbranch_scc1 L_exit")
        a("s_waitcnt vmcnt(0)")
        kv_decode()
        a(f"s_cmp_lt_u32 s{sKVP}, {target}"); a(f"s_cbranch_scc1 {lab}")
    def kv_decode():
        a(f"v_readfirstlane_b32 s{sKVP}, v{vJ}")
        a(f"s_lshr_b32 s{sT1}, s{sKVP}, 16"); a(f"s_and_b32 s{sKVP}, s{sKVP}, 0xffff"); a(f"s_min_u32 s{sKVP}, s{sKVP}, s{sT1}")
    if sync:
        a.lab("R_init")
        a(f"buffer_load_dword v42, off, s[{sDB}:{sDB+3}], 0 offset:{D_INIT} sc1")
        a(f"s_add_u32 s{sSPIN}, s{sSPIN}, 1")
        a(f"s_cmp_gt_u32 s{sSPIN}, 0x100000"); a("s_cbranch_scc1 L_exit")
        a("s_waitcnt vmcnt(0)")
        a(f"v_readfirstlane_b32 s{sT0}, v42")
        a(f"s_cmp_lt_u32 s{sT0}, 1"); a("s_cbranch_scc1 R_init")
        a(f"s_lshl_b32 s{sFL}, s{sH}, 7"); a(f"s_add_u32 s{sFL}, s{sFL}, {FLG:#x}")
        a(f"s_add_u32 s{sFR}, s{sFL}, 4096")
        kv_wait("R_kv0", 2)
    a("s_barrier")
    a("v_mov_b64 v[40:41], 0"); a("v_mov_b64 v[42:43], 0")
    a(f"ds_write_b128 v{vMS}, v[40:43] offset:8192")
    a(f"s_mov_b32 s{sONE}, 0x3f803f80"); a(f"s_mov_b32 s{sONE+1}, 0x3f803f80")
    def WL(dst, ch, tau, tag=None):
        j = RES.index(ch); out = []
        for hf in range(2):
            off = CH(j) + tau * 8192 + hf * 4096
            out.append(I(f"ds_read_b128 {vr(dst+4*hf,4)}, v{(vMS, vWA0, vWA1)[off >> 16]} offset:{off & 0xffff}", lg if tag else None, tag))
        return out
    def I(text, cnt=None, tag=None):
        def f():
            a(text)
            if cnt is not None: cnt.issue(tag)
        return f
    def run(*items):
        for it in items:
            if isinstance(it, (list, tuple)): run(*it)
            else: it()
    def preload(): run(WL(ST, ("q", 0), 0), WL(ST + 8, ("q", 0), 1))
    def preload2(): run(WL(F[2], ("k", 0), 0), WL(F[4], ("k", 0), 1))
    preload(); preload2()
    for r in range(AQ0, AQ0 + 16, 2): a(f"v_mov_b64 {vr(r,2)}, 0")
    a(f"s_mov_b32 s{sS}, 0"); a(f"s_mov_b32 s{sTAG}, 1")
    a(f"v_mov_b32 v{vJ}, 0")
    for r in list(range(F[0], F[0] + 8)) + [E + 1]: a(f"v_min_u32 v{r}, -2, v{r}")
    a(f"v_and_b32 v{E}, 0x3ff, v{vMS}"); a(f"v_lshrrev_b32 v{E+2}, 2, v{vMS}")
    a("s_waitcnt lgkmcnt(0)")

    WSR = f"s[{sWS}:{sWS+3}]"
    def smf(acc, A, B, pvidx=False):
        a(f"v_smfmac_f32_16x16x64_bf16 {vr(acc,4)}, {vr(A,4)}, {B}, v{vIDX}" + (" abid:1" if pvidx else ""))
    FR = {0: F[0], 1: F[1], 2: E, 3: F[2], 4: F[3], 5: F[4], 6: F[5], 7: F[0], 8: F[1]}
    S0, S1 = vr(ST, 8), vr(ST + 8, 8)
    ACC = {"q": (AQ0, AQ1), "k": (AK0, AK1), "v": (AQ0, AQ1)}
    def M(m, pos, tau, B=None):
        if B is None: B = wr((m, pos), tau)
        return lambda: smf(ACC[m][tau], FR[pos], B)
    def LW(tag): return lambda: lg.wait(tag)
    def VW(tag): return lambda: vm.wait(tag)
    def add2(r): return [I(f"v_add_f32 v{r}, v{r}, v{r+2}"), I(f"v_add_f32 v{r+1}, v{r+1}, v{r+3}")]
    def pkadd(r): a(f"v_pk_add_f32 {vr(r,2)}, {vr(r,2)}, {vr(r+2,2)}")
    def PK(r): return lambda: pkadd(r)
    def cvt(d, x, y): return I(f"v_cvt_pk_bf16_f32 v{d}, v{x}, " + (f"v{y}" if y is not None else "0"))
    def z2(r): return I(f"v_mov_b64 {vr(r,2)}, 0")
    def rdf(pos):
        k = (pos - 3) % 3; off = 4096 * ((pos - 3) // 3)
        return I(f"ds_read_b128 {vr(FR[pos],4)}, v{(vM1,vM2,vM3)[k]} offset:{off}", lg, f"f{pos}")
    def sel(d, x, y): return I(f"v_cndmask_b32_dpp v{d}, v{x}, v{y}, vcc quad_perm:[2,3,2,3] row_mask:0xf bank_mask:0xf")
    BAR = I("s_barrier")
    TS_ = lambda: ts()

    if tstamp == 3:
        a("s_memtime s[76:77]"); a("s_memrealtime s[80:81]"); a("s_waitcnt lgkmcnt(0)")
    a(f"s_cmp_gt_u32 s7, {0xffff if not forceg else 0}"); a("s_cbranch_scc1 G_step")
    loop0 = len(a.L)
    a(".p2align 6")
    a.lab("R_step")
    ts()
    a0, a1 = WL(ST, ("q", 3), 0, "a0"), WL(ST + 8, ("q", 3), 1, "a1")
    b0, b1 = WL(ST, ("q", 7), 0, "b0"), WL(ST + 8, ("q", 7), 1, "b1")
    c0, c1 = WL(ST, ("k", 2), 0, "c0"), WL(ST + 8, ("k", 3), 0, "c1")
    d0, d1_ = WL(ST, ("k", 8), 0, "d0"), WL(ST + 8, ("k", 2), 1, "d1")
    e0, e1 = WL(ST, ("k", 3), 1, "e0"), WL(ST + 8, ("k", 8), 1, "e1")
    aq0, aq1, ak0, ak1 = add2(AQ0), add2(AQ1), add2(AK0), add2(AK1)
    sl = [sel(KX1 + r, AQ1 + r, KX0 + r) for r in range(4)]
    NX = 32 * 16384
    def PF(sreg):
        if not pf: return []
        return [I(f"s_add_u32 s{sT0}, s{sreg}, {NX:#x}"), I(f"buffer_load_dword v{vJ}, v{vMS}, {WSR}, s{sT0} offen", vm, "pf")]
    def sig(val):
        a(f"v_mov_b32 v{vJ}, {val}")
        a("s_mov_b64 exec, 1")
        a(f"buffer_store_dword v{vJ}, off, {WSR}, s{sFR} sc1")
        a("s_mov_b64 exec, -1")
    def SIG():
        if not sync: return
        sig(f"s{sS}"); vm.issue("pf")
    def KVF():
        if not sync: return
        a(f"buffer_load_dword v{vJ}, off, {WSR}, s{sFL} sc1"); vm.issue("pf")
    B1 = F[2]
    vm.q = ["l0", "l1", "l2"] + (["y", "y", "y"] if two2 else [])
    CK = E + 3
    run(VW("l0"), lambda: tc(7),
        I(f"v_max3_u32 v{CK}, v{F[0]}, v{F[0]+1}, v{F[0]+2}"), I(f"v_max_u32 v{CK}, v{CK}, v{F[0]+3}"),
        M("q", 0, 0, S0), I(f"ds_write_b128 v{vMS}, {vr(F[0],4)}", lg, "w"),
        M("q", 0, 1, S1), VW("l1"), I(f"v_max3_u32 v{CK}, v{CK}, v{F[1]}, v{F[1]+1}"), I(f"v_max3_u32 v{CK}, v{CK}, v{F[1]+2}, v{F[1]+3}"),
        M("k", 0, 0, vr(F[2], 8)), I(f"ds_write_b128 v{vMS}, {vr(F[1],4)} offset:4096", lg, "w"),
        M("k", 0, 1, vr(F[4], 8)), VW("l2"), I(f"v_max_u32 v{CK}, v{CK}, v{E+1}"),
        M("q", 1, 0), I(f"ds_write_b32 v{E+2}, v{E+1} offset:12288", lg, "w"), I(f"v_cmp_eq_u32 vcc, -1, v{CK}"),
        M("q", 1, 1), I("s_cbranch_vccnz R_fix"), a0[0],
        M("k", 1, 0), a0[1],
        M("k", 1, 1), a1[0], a1[1],
        VW("y") if two2 else [],
        LW("w"), BAR,
        rdf(3), rdf(4), I(f"ds_read_b128 {vr(E,4)}, v{E} offset:12288", lg, "f2"), rdf(5),
        I(f"buffer_load_dwordx4 {vr(KX0,4)}, v{vMS}, {WSR}, s{sKV0} offen{sc_out}", vm, "kx"),
        I(f"buffer_load_dwordx4 {vr(KX1,4)}, v{vMS}, {WSR}, s{sKV1} offen{sc_out}", vm, "kx"),
        I(f"s_mov_b64 vcc, s[{mP}:{mP+1}]"),
        LW("f3"),
        M("q", 3, 0, S0), rdf(6),
        M("q", 3, 1, S1), rdf(8), LW("f4"),
        M("q", 4, 0), rdf(7),
        M("q", 4, 1), b0[0], LW("f2"),
        M("q", 2, 0), b0[1],
        M("q", 2, 1), b1[0], LW("f5"),
        M("q", 5, 0), b1[1],
        M("q", 5, 1), BAR, LW("f8"),
        M("q", 6, 0), SIG,
        M("q", 8, 0), LW("b0"),
        M("q", 7, 0, S0), c0[0],
        M("q", 6, 1), c0[1], LW("b1"),
        M("q", 7, 1, S1), c1[0],
        M("q", 8, 1), c1[1], TS_, aq0[0],
        M("k", 4, 0), PF(sKV0) if pf in (1, 2) else [], aq0[1],
        M("k", 5, 0), LW("c0"), cvt(AQ0 + 2, AQ0, AQ0 + 1),
        M("k", 2, 0, S0), d0[0], aq1[0],
        M("k", 6, 0), d0[1], aq1[1], LW("c1"),
        M("k", 3, 0, S1), I(f"ds_write_b32 v{vXq}, v{AQ0+2} offset:{8192+4}", lg, "w"), cvt(AQ0 + 3, AQ1, AQ1 + 1),
        M("k", 7, 0), I(f"ds_write_b32 v{vXq}, v{AQ0+3} offset:{8192+4+512}", lg, "w"),
        M("k", 4, 1), I(f"ds_read_b64_tr_b16 {vr(AQ0,2)}, v{vXO} offset:8192", lg, "xo"),
            I(f"ds_read_b64_tr_b16 {vr(AQ0+2,2)}, v{vXO} offset:{8192+256}", lg, "xo"), LW("d0"),
        M("k", 8, 0, S0), d1_[0],
        M("k", 5, 1), d1_[1],
        M("k", 6, 1), e0[0], VW("kx"),
        M("k", 7, 1), e0[1], LW("xo"),
        I(f"v_mfma_f32_16x16x32_bf16 {vr(AQ1,4)}, {vr(KX0,4)}, {vr(AQ0,4)}, 0"), ak0[0], ak0[1],
        I(f"v_mfma_f32_16x16x32_bf16 {vr(KX0,4)}, {vr(KX1,4)}, {vr(AQ0,4)}, 0"), LW("d1"), cvt(AK0 + 3, AK0, AK0 + 1), z2(AQ0),
        M("k", 2, 1, S1), e1[0], z2(AQ0 + 2),
        e1[1], LW("e0"),
        M("k", 3, 1, S0), I(f"ds_write_b32 v{vXk}, v{AK0+3} offset:8192", lg, "w"), sl[0],
        M("v", 3, 0), I(f"buffer_load_dwordx2 {vr(AK0,2)}, v{vMS}, {WSR}, s{sKV2} offen{sc_out}", vm, "vx"), sl[1], LW("e1"),
        M("k", 8, 1, S1), TS_, sl[2], sl[3],
        M("v", 4, 0), I(f"ds_write_b128 v{vMS}, {vr(KX1,4)} offset:12288", lg, "w"),
        z2(AQ1), z2(AQ1 + 2),
        ak1, cvt(AK1 + 3, AK1, AK1 + 1),
        M("v", 3, 1), I(f"ds_write_b32 v{vXk}, v{AK1+3} offset:{8192+512}", lg, "w"),
        M("v", 4, 1), I(f"buffer_load_dwordx2 {vr(AK1,2)}, v{vMS}, {WSR}, s{sKV2} offen offset:8{sc_out}", vm, "vx"),
        M("v", 5, 0), I(f"buffer_load_dwordx2 {vr(B1,2)}, v{vMS}, {WSR}, s{sKV3} offen{sc_out}", vm, "vx"),
        M("v", 5, 1), I(f"buffer_load_dwordx2 {vr(B1+4,2)}, v{vMS}, {WSR}, s{sKV3} offen offset:8{sc_out}", vm, "vx"),
        LW("w"), BAR)
    xr = [I(f"ds_read_b64_tr_b16 {vr(ST+4*ks+2*x,2)}, v{vXR} offset:{8192 + (ks&1)*2048 + (ks>>1)*512 + x*256}", lg, f"x{ks}")
          for ks in range(4) for x in range(2)]
    SMD = F[0]
    def SM(ks): return I(f"v_mfma_f32_16x16x32_bf16 {vr(SMD,4)}, {vr(ST+4*ks,4)}, {vr(ST+4*ks,4)}, {vr(SMD,4) if ks else 0}")
    def addq(d, x): return [I(f"v_add_f32 v{d+r}, v{d+r}, v{x+r}") for r in range(4)]
    m_, sm_, t_ = SMD + 3, SMD + 2, SMD
    p1, p2, p3 = addq(KX1, KX0), addq(KX1, F[4]), addq(KX1, F[5])
    wA = WL(ST, ("o", 1), 0, "woA") + WL(ST + 8, ("o", 1), 1, "woA")
    def MV(pos, tau, A): return lambda: smf(ACC["v"][tau], A, wr(("v", pos), tau))
    OA0, OA1 = F[4], F[5]
    run(xr[0], xr[1],
        M("v", 6, 0), I(f"ds_read_b128 {vr(KX0,4)}, v{vM1} offset:12288", lg, "p1"), xr[2],
        M("v", 6, 1), xr[3], I(f"ds_read_b128 {vr(F[4],4)}, v{vM2} offset:12288", lg, "p2"),
        M("v", 7, 0), xr[4], xr[5],
        M("v", 7, 1), I(f"ds_read_b128 {vr(F[5],4)}, v{vM3} offset:12288", lg, "p3"), LW("x1"),
        SM(0), xr[6], xr[7],
        SM(1), PF(sKV2), p1[0], p1[1], LW("x2"),
        SM(2), PF(sKV3), p1[2], p1[3],
        M("v", 8, 0), I(f"ds_read_b128 {vr(KX0,4)}, v{vMS}", lg, "o0"), LW("x3"),
        SM(3), TS_, p2[0], p2[1],
        M("v", 8, 1), I(f"ds_read_b128 {vr(F[1],4)}, v{vMS} offset:4096", lg, "o1"), p2[2], p2[3],
        p3,
        sel(sm_, SMD, SMD + 1),
        I(f"v_max3_f32 v{m_}, v{KX1}, v{KX1+1}, v{KX1+2}"),
        I(f"v_max3_f32 v{m_}, v{m_}, v{KX1+3}, v{sm_}"),
        M("v", 2, 0), PF(sKV1) if pf >= 2 else [],
        I(f"v_max_f32_dpp v{m_}, v{m_}, v{m_} quad_perm:[2,3,0,1] row_mask:0xf bank_mask:0xf"),
        I(f"v_mov_b32 v{t_}, v{m_}"),
        M("v", 2, 1), wA[1],
        I(f"v_permlane16_swap_b32 v{t_}, v{m_}"),
        I(f"v_max_f32 v{m_}, v{t_}, v{m_}"),
        I(f"v_mov_b32 v{t_}, v{m_}"), LW("o1"),
        MV(0, 0, KX0), wA[2],
        I(f"v_permlane32_swap_b32 v{t_}, v{m_}"),
        I(f"v_max_f32 v{m_}, v{t_}, v{m_}"),
        MV(1, 0, F[1]), wA[3],
        I(f"v_mul_f32 v{t_}, s{sC}, v{m_}"),
        MV(0, 1, KX0), wA[0],
        I(f"v_fma_f32 v{sm_}, v{sm_}, s{sC}, -v{t_}"),
        MV(1, 1, F[1]), KVF,
        [I(f"v_fma_f32 v{KX1+r}, v{KX1+r}, s{sC}, -v{t_}") for r in range(4)],
        I(f"v_exp_f32 v{sm_}, v{sm_}"),
        [I(f"v_exp_f32 v{KX1+r}, v{KX1+r}") for r in range(4)],
        cvt(sm_, sm_, None),
        cvt(E, KX1, KX1 + 1), cvt(E + 2, KX1 + 2, KX1 + 3),
        I(f"v_cndmask_b32 v{E+1}, 0, v{sm_}, s[{mLO}:{mLO+1}]"),
        I(f"v_cndmask_b32 v{E+3}, v{sm_}, 0, s[{mLO}:{mLO+1}]"),
        PK(AQ0), PK(AQ1),
        z2(OA0), z2(OA0 + 2),
        cvt(AK0 + 2, AQ0, AQ0 + 1), cvt(AK1 + 2, AQ0, AQ0 + 1),
        z2(OA1), VW("vx"), z2(OA1 + 2),
        lambda: smf(OA0, E, vr(AK0, 8), True),
        I(f"s_cmp_eq_u32 s{sS}, {nsteps-1}"),
        cvt(B1 + 2, AQ1, AQ1 + 1), cvt(B1 + 6, AQ1, AQ1 + 1),
        I(f"v_mov_b64 {vr(KX0,2)}, s[{sONE}:{sONE+1}]"), I(f"v_mov_b64 {vr(KX0+2,2)}, s[{sONE}:{sONE+1}]"),
        lambda: smf(OA1, E, vr(B1, 8), True),
        I("s_cbranch_scc1 R_done"),
        I(f"v_mfma_f32_16x16x32_bf16 {vr(KX1,4)}, {vr(E,4)}, {vr(KX0,4)}, 0"),
        TS_)
    VST = [I(f"v_mov_b32 v{AK0}, v{AK1+3}"), I(f"v_mov_b32 v{AK0+1}, v{B1+2}"),
           I(f"buffer_store_dwordx4 {vr(AK0,4)}, v{vMS}, {WSR}, s{sKVM} offen{sc_out}", vm, "st")]
    if noexp: VST = []
    wC = WL(ST, ("o", 8), 0, "woC") + WL(ST + 8, ("o", 8), 1, "woC")
    accs = [F[0], F[1], AQ0, AQ1, KX0, F[4], F[5], AK0, AK1]
    run(add2(OA0), z2(F[0]), z2(F[0] + 2), add2(OA1),
        add2(KX1),
        I(f"v_rcp_f32 v{KX1}, v{KX1}"), I(f"v_rcp_f32 v{KX1+1}, v{KX1+1}"),
        z2(F[1]),
        I(f"v_pk_mul_f32 {vr(OA0,2)}, {vr(OA0,2)}, {vr(KX1,2)}"),
        I(f"v_pk_mul_f32 {vr(OA1,2)}, {vr(OA1,2)}, {vr(KX1,2)}"),
        cvt(KX1 + 2, OA0, OA0 + 1),
        cvt(KX1 + 3, OA1, OA1 + 1),
        I(f"ds_write_b64 v{vXq}, {vr(KX1+2,2)}", lg, "w"),
        VST, z2(F[1] + 2), z2(AQ0), z2(AQ0 + 2), z2(AQ1), z2(AQ1 + 2),
        LW("w"), BAR,
        [I(f"ds_read_b64_tr_b16 {vr(F[2]+4*ks+2*x,2)}, v{vXR} offset:{ks*2048 + x*256}", lg, f"a{ks}") for ks in range(2) for x in range(2)],
        z2(KX0), z2(KX0 + 2), z2(F[4]), z2(F[4] + 2), z2(F[5]), z2(F[5] + 2), z2(AK1))
    ts()
    A0, A1 = F[2], F[3]
    def WB(t, ks):
        if t in (1, 8): return (S0, S1)[ks]
        return wr(("o", t), ks)
    def O(t, ks): return lambda: smf(accs[t], (A0, A1)[ks], WB(t, ks))
    def fin(t):
        r = accs[t]; return add2(r) + [cvt(E + t % 3, r, r + 1)]
    def pst(T):
        return I(f"buffer_store_dwordx4 {vr(E,4)}, v{KX1+2}, {WSR}, s{(sPSo, sT0, sT1)[T]} offen ; HO", vm, "ps")
    f = [fin(t) for t in range(9)]
    run(LW("a0"), O(0, 0), I(f"s_add_u32 s{sT0}, s{sPSo}, {32*4096:#x}"), z2(AK1 + 2),
        O(1, 0), wC[0], z2(AK0), LW("a1"),
        O(0, 1), wC[1], z2(AK0 + 2),
        O(1, 1), wC[2], I(f"v_and_b32 v{KX1+2}, 0x70, v{vMS}"),
        O(2, 0), wC[3], I(f"v_and_b32 v{KX1+3}, 0x380, v{vMS}"),
        O(2, 1), I(f"s_add_u32 s{sT1}, s{sPSo}, {64*4096:#x}"), I(f"v_lshl_or_b32 v{KX1+2}, v{KX1+3}, 5, v{KX1+2}"), f[0][0],
        O(3, 0), f[0][1], I(f"v_mov_b32 v{E+3}, s{sTAG}"),
        O(3, 1), f[0][2], f[1][0],
        O(4, 0), f[1][1], f[2][0],
        O(4, 1), f[1][2], f[2][1],
        O(5, 0), f[2][2], f[3][0],
        O(5, 1), pst(0), f[3][1],
        O(6, 0), f[4][0], f[3][2],
        O(6, 1), f[4][1], f[4][2],
        O(7, 0), f[5][0], f[5][1],
        O(7, 1), LW("woC"), f[5][2], f[6][0],
        O(8, 0), pst(1), f[6][1],
        O(8, 1), f[7][0], f[7][1], f[6][2], f[7][2],
        PK(accs[8]), f[8][2], pst(2))
    ts()
    preload()
    a(f"s_and_b32 s{sT0}, s{sTAG}, 3"); a(f"s_lshl_b32 s{sT0}, s{sT0}, 14")
    a(f"s_add_u32 s{sMOo}, s{sMOb}, s{sT0}"); a(f"s_add_u32 s{sMI2}, s{sMIb}, s{sT0}")
    a(f"s_add_u32 s{sMI0}, s{sT0}, {MEMS:#x}"); a(f"s_add_u32 s{sMI1}, s{sT0}, {MEMS + 4096:#x}")
    a(f"s_xor_b32 s{sT0}, s{sT0}, 0x8000"); a(f"s_add_u32 s{sARM}, s{sARb}, s{sT0}")
    if tstamp in (1, 2, 4):
        a(f"s_memrealtime s[{sTS+18}:{sTS+19}]")
        a(f"s_lshl_b32 s{sT0}, s{sH}, 2"); a(f"s_add_u32 s{sT0}, s{sT0}, s{sW}"); a(f"s_lshl_b32 s{sT0}, s{sT0}, 6")
        a(f"s_add_u32 s{sT0}, s{sT0}, s{sS}"); a(f"s_lshl_b32 s{sT0}, s{sT0}, 6"); a(f"s_add_u32 s{sT0}, s{sT0}, {TS:#x}")
        a(f"v_bfe_u32 v{F[1]+1}, v{vMS}, 2, 8")
        a("s_waitcnt lgkmcnt(0)")
        for i in range(9): a(f"v_writelane_b32 v{F[1]}, s{sTS+2*i}, {i}")
        a(f"v_writelane_b32 v{F[1]}, s{sTS+18}, 14")
        a(f"v_writelane_b32 v{F[1]}, s{sSPIN}, 15")
        a("s_mov_b64 exec, 0xffff")
        a(f"buffer_store_dword v{F[1]}, v{F[1]+1}, {WSR}, s{sT0} offen")
        a("s_mov_b64 exec, -1")
    if nocomm:
        preload2(); a("s_branch R_h2")
    a(f"s_cmp_eq_u32 s{sW}, 3"); a("s_cbranch_scc1 R_w3")
    a(f"v_mov_b32 v{KX1}, 0x3f80"); a(f"v_mov_b32 v{KX1+1}, 0x3f800000")
    a(f"v_cndmask_b32 v{KX1}, v{KX1}, v{KX1+1}, s[{mODD}:{mODD+1}]")
    for k, m in enumerate((mS0, mS1, mS2)): a(f"v_cndmask_b32 v{KX0+k}, 0, v{KX1}, s[{m}:{m+1}]")
    a(f"v_mov_b32 v{KX0+3}, 0")
    a(f"v_and_b32 v{F[0]}, 0x10, v{vMS}")
    a(f"v_and_b32 v{F[0]+1}, 0xe0, v{vMS}")
    a(f"v_lshl_or_b32 v{F[0]}, v{F[0]+1}, 5, v{F[0]}")
    a(f"v_bfe_u32 v{F[0]+1}, v{vMS}, 8, 1")
    a(f"v_lshl_or_b32 v{F[0]}, v{F[0]+1}, 3, v{F[0]}")
    a(f"v_bfe_u32 v{F[0]+1}, v{vMS}, 9, 1")
    a(f"v_lshl_or_b32 v{F[0]}, v{F[0]+1}, 2, v{F[0]}")
    def gap(n):
        for _ in range(n):
            a(f"v_mov_b32 v{F[0]+2}, 0"); a("s_nop 2")
    def p1_issue(R_):
        for j in range(4): a(f"buffer_load_dwordx4 {vr(R_+4*j,4)}, v{vMS}, {WSR}, s{sPLo} offen offset:{1024*j} sc1")
    def p1_check(R_, fail, younger):
        for j in range(4):
            a(f"s_waitcnt vmcnt({3-j+younger})")
            if j == 0: tc(2)
            if j == 3: tc(3)
            a(f"v_cmp_ne_u32 vcc, s{sTAG}, v{R_+4*j+3}")
            a(f"v_mfma_f32_16x16x32_bf16 {vr(KX1,4)}, {vr(R_+4*j,4)}, {vr(KX0,4)}, {vr(KX1,4) if j else 0}")
            a(f"s_cbranch_vccnz {fail}")
    def spin():
        a(f"s_add_u32 s{sSPIN}, s{sSPIN}, 1")
        a(f"s_cmp_gt_u32 s{sSPIN}, 0x400000"); a("s_cbranch_scc1 L_exit")
    if not two1: preload2()
    gap(d1)
    if dw:
        a(f"s_cmp_eq_u32 s{sW}, 0"); a("s_cbranch_scc1 R_p1")
        gap(dw)
        a(f"s_cmp_eq_u32 s{sW}, 1"); a("s_cbranch_scc1 R_p1")
        gap(dw)
    a.lab("R_p1")
    tc(1)
    if two1:
        p1_issue(AQ0)
        gap(g1)
        a("s_branch R_p1a")
        a.lab("R_p1b")
        p1_issue(AQ0)
        spin()
        p1_check(F[2], "R_p1a", 4)
        a("s_branch R_p1ok")
        a.lab("R_p1a")
        p1_issue(F[2])
        spin()
        p1_check(AQ0, "R_p1b", 4)
        a.lab("R_p1ok")
        a("s_nop 6")
    else:
        p1_issue(AQ0)
        spin()
        p1_check(AQ0, "R_p1", 0)
    a(f"v_permlane32_swap_b32 v{KX1}, v{KX1+2}")
    a(f"v_permlane32_swap_b32 v{KX1+1}, v{KX1+3}")
    pkadd(KX1)
    a(f"v_cvt_pk_bf16_f32 v{KX1}, v{KX1}, v{KX1+1}")
    a(f"s_mov_b64 exec, s[{mN6}:{mN6+1}]")
    a(f"v_min_u32 v{KX1}, -2, v{KX1}")
    a(f"buffer_store_dword v{KX1}, v{F[0]}, {WSR}, s{sMOo} offen ; HO")
    a("s_mov_b64 exec, -1")
    a("s_branch R_h2")
    a.lab("R_w3")
    if not two1: preload2()
    a(f"v_mov_b64 {vr(KX0,2)}, -1"); a(f"v_mov_b64 {vr(KX0+2,2)}, -1")
    a(f"s_mov_b64 exec, s[{mL18}:{mL18+1}]")
    a(f"buffer_store_dwordx4 {vr(KX0,4)}, v{vMS}, {WSR}, s{sARM} offen ; HO")
    a("s_mov_b64 exec, -1")
    a("s_waitcnt vmcnt(1)")
    a.lab("R_h2")
    ts(); tc(4)
    a("s_barrier")
    for r in (sKV0, sKV1, sKV2, sKV3): a(f"s_add_u32 s{r}, s{r}, {32*16384:#x}")
    a(f"s_add_u32 s{sKVM}, s{sKVM}, {32*4096:#x}")
    a(f"s_add_u32 s{sS}, s{sS}, 1"); a(f"s_add_u32 s{sTAG}, s{sTAG}, 1")
    def gap2(n):
        for _ in range(n):
            a(f"v_mov_b32 v{KX1}, 0"); a("s_nop 2")
    def p2_issue():
        a(f"buffer_load_dwordx4 {vr(F[0],4)}, v{vMS}, {WSR}, s{sMI0} offen sc1")
        a(f"buffer_load_dwordx4 {vr(F[1],4)}, v{vMS}, {WSR}, s{sMI1} offen sc1")
        a(f"buffer_load_dword v{E+1}, v{E+2}, {WSR}, s{sMI2} offen sc1")
    a(f"v_and_b32 v{E}, 0x3ff, v{vMS}"); a(f"v_lshrrev_b32 v{E+2}, 2, v{vMS}")
    if sync:
        kv_decode()
        a(f"s_add_u32 s{sT0}, s{sS}, 2"); a(f"s_min_u32 s{sT0}, s{sT0}, 64")
        a(f"s_cmp_ge_u32 s{sKVP}, s{sT0}"); a("s_cbranch_scc1 R_kvok")
        kv_wait("R_kv1", f"s{sT0}")
        a.lab("R_kvok")
    if two1:
        a("s_waitcnt vmcnt(1)")
        preload2()
    gap2(d2)
    tc(5)
    if nocomm:
        a("s_waitcnt vmcnt(0)")
        for r in list(range(F[0], F[0] + 8)) + [E + 1]: a(f"v_mov_b32 v{r}, 0")
    else: p2_issue()
    for r in range(AQ0, AQ0 + 16, 2): a(f"v_mov_b64 {vr(r,2)}, 0")
    gap2(g2)
    if two2 and not nocomm: p2_issue()
    ts()
    a("s_waitcnt lgkmcnt(0)")
    a("s_branch R_step")
    a.lab("R_fix")
    p2_issue()
    a("s_nop 4")
    for r in range(AK0, AK0 + 8, 2): a(f"v_mov_b64 {vr(r,2)}, 0")
    for r in range(AQ0, AQ0 + 8, 2): a(f"v_mov_b64 {vr(r,2)}, 0")
    spin()
    a("s_waitcnt lgkmcnt(0)")
    a("s_branch R_step")
    a.lab("R_done")
    run(VST)
    if tstamp == 3:
        a("s_memtime s[78:79]"); a("s_memrealtime s[82:83]"); a("s_waitcnt lgkmcnt(0)")
        a("s_sub_u32 s78, s78, s76"); a("s_sub_u32 s82, s82, s80")
        a(f"v_mov_b32 v{F[0]}, s78"); a(f"v_mov_b32 v{F[0]+1}, s82"); a(f"v_mov_b32 v{F[0]+2}, s{sSPIN}"); a(f"v_mov_b32 v{F[0]+3}, 0")
        a(f"s_lshl_b32 s{sT0}, s{sH}, 12"); a(f"s_add_u32 s{sT0}, s{sT0}, {TS:#x}")
        a(f"buffer_store_dwordx4 {vr(F[0],4)}, v{vMS}, {WSR}, s{sT0} offen")
    a("s_waitcnt vmcnt(0)")
    if sync:
        a("s_barrier")
        a(f"s_cmp_lg_u32 s{sW}, 3"); a("s_cbranch_scc1 L_exit")
        sig(64)
        a("s_waitcnt vmcnt(0)")
    a("s_branch L_exit")
    for c in list(a.L[loop0:]):
        a.L.append(Ins(re.sub(r"\bR_", "G_", c.text).replace(" ; HO", " sc1")))

def gen_roles(a, nwg=256):
    a(f"s_cmp_ge_u32 s2, {nwg}"); a("s_cbranch_scc1 L_exit")
    a(f"s_load_dwordx2 s[4:5], s[0:1], {DBG}")
    a("s_getreg_b32 s6, hwreg(HW_REG_XCC_ID)")
    a("s_and_b32 s6, s6, 15")
    a("s_waitcnt lgkmcnt(0)")
    srd(a, sDB, 4, 256)
    D = f"s[{sDB}:{sDB+3}]"
    a("v_cmp_eq_u32 vcc, 0, v0")
    a("s_and_saveexec_b64 s[70:71], vcc")
    a("s_cbranch_execz T_join")
    a(f"s_cmp_lg_u32 s6, {RXCD}"); a("s_cbranch_scc1 T_work")
    a("v_mov_b32 v2, 1")
    a(f"buffer_atomic_add v2, off, {D}, 0 offset:{D_RT} sc0")
    a("s_waitcnt vmcnt(0)")
    a("v_readfirstlane_b32 s7, v2")
    a("s_cmp_lt_u32 s7, 32"); a("s_cbranch_scc1 T_pub")
    a.lab("T_work")
    a("v_mov_b32 v2, 1")
    a(f"buffer_atomic_add v2, off, {D}, 0 offset:{D_WT} sc0")
    a("s_waitcnt vmcnt(0)")
    a("v_add_u32 v2, 32, v2")
    a("v_readfirstlane_b32 s7, v2")
    a(f"s_cmp_lt_u32 s7, {nwg}"); a("s_cbranch_scc1 T_pub")
    a("v_mov_b32 v2, 1")
    a(f"buffer_atomic_add v2, off, {D}, 0 offset:{D_RT} sc0")
    a("s_waitcnt vmcnt(0)")
    a("v_cmp_gt_u32 vcc, 32, v2")
    a(f"v_mov_b32 v3, {nwg}")
    a("v_cndmask_b32 v2, v3, v2, vcc")
    a.lab("T_pub")
    a("v_mov_b32 v1, 0")
    a("ds_write_b32 v1, v2")
    a("s_waitcnt lgkmcnt(0)")
    a.lab("T_join")
    a("s_mov_b64 exec, -1")
    a("s_barrier")
    a("v_mov_b32 v1, 0")
    a("ds_read_b32 v2, v1")
    a("s_waitcnt lgkmcnt(0)")
    a(f"v_readfirstlane_b32 s{sH}, v2")
    a("s_barrier")
    a(f"s_cmp_ge_u32 s{sH}, 32"); a("s_cbranch_scc1 L_worker")
    a(f"s_cmp_eq_u32 s6, {RXCD}"); a("s_cselect_b32 s7, 1, 0x10001")

if __name__ == "__main__":
    import sys
    opts = dict(tstamp=0, d1=0, d2=0, nsteps=64, pf=2, nocomm=0, noexp=0, g1=0, g2=0, dw=0, two1=0, two2=0)
    tsl = []
    for x in sys.argv[2:]:
        k, v = x.split("=")
        if k == "tsl": tsl = [int(y) for y in v.split(",")]
        else: opts[k] = int(v)
    a = Asm()
    gen_roles(a)
    gen_R(a, tstamp=opts["tstamp"], d1=opts["d1"], d2=opts["d2"], nsteps=opts["nsteps"], pf=opts["pf"], nocomm=opts["nocomm"], noexp=opts["noexp"], g1=opts["g1"], g2=opts["g2"], dw=opts["dw"], two1=opts["two1"], two2=opts["two2"])
    a.lab("L_worker")
    a.lab("L_exit")
    a("s_endpgm")
    if tsl:
        i0 = [i for i, c in enumerate(a.L) if c.label == "R_step"][0]
        for n, pos in sorted(enumerate(tsl), key=lambda z: -z[1]):
            a.L.insert(i0 + 1 + pos, Ins(f"s_memtime s[{sTS+2*(n+1)}:{sTS+2*(n+1)+1}]"))
    body = a.finalize()
    s = "; @launch kernel=rec_kernel grid=(256,1,1) block=(256,1,1) lds=163840\n"
    s += '.amdgcn_target "amdgcn-amd-amdhsa--gfx950"\n.text\n' + kernel_header("rec_kernel") + body
    s += '.section .rodata,"a"\n' + kernel_desc("rec_kernel", 512, accum=256)
    open(sys.argv[1], "w").write(s)
```

```python
from asmlib import *
from layout import *
from gen_r import Cnt, vr, srd
import struct, math

qWS, qX, qW, qAUX, qOUT = 8, 12, 16, 20, 24
sW, sHD, sS, sSTR, sT0, sT1, sT2, sT3, sBUF, sXO = 36, 37, 38, 39, 40, 41, 42, 43, 44, 45
Q = lambda r: f"s[{r}:{r+3}]"
f32bits = lambda x: struct.unpack("<I", struct.pack("<f", x))[0]

def lane_vars(a):
    a("v_lshrrev_b32 v1, 6, v0")
    a(f"v_readfirstlane_b32 s{sW}, v1")
    a("v_and_b32 v1, 63, v0")
    a("v_and_b32 v2, 15, v0")
    a("v_bfe_u32 v3, v0, 4, 2")
    a("v_lshlrev_b32 v4, 4, v0")

DIAG = 0
def rtime(a, r):
    if DIAG:
        a(f"s_memrealtime s[{r}:{r+1}]"); a("s_waitcnt lgkmcnt(0)")
def acc_wait(a, begin):
    if not DIAG: return
    if begin: rtime(a, 96)
    else:
        rtime(a, 98); a("s_sub_u32 s98, s98, s96"); a("s_add_u32 s86, s86, s98")
qDB = 32
sSP, sKVP = 68, 69
def wait_ge(a, srdreg, soff, off, target, vt, sleep=2, halves=False, keep=None):
    L0, L1 = a.newlab("WT"), a.newlab("WTX")
    a(f"s_mov_b32 s{sSP}, 0")
    acc_wait(a, True)
    a.lab(L0)
    a(f"buffer_load_dword v{vt}, off, {Q(srdreg)}, {soff} offset:{off} sc1")
    a("s_waitcnt vmcnt(0)")
    a(f"v_readfirstlane_b32 s70, v{vt}")
    if halves:
        a("s_lshr_b32 s71, s70, 16"); a("s_and_b32 s70, s70, 0xffff"); a("s_min_u32 s70, s70, s71")
    a(f"s_cmp_ge_u32 s70, {target}"); a(f"s_cbranch_scc1 {L1}")
    a(f"s_sleep {sleep}")
    a(f"s_add_u32 s{sSP}, s{sSP}, 1")
    a(f"s_cmp_lt_u32 s{sSP}, 0x80000"); a(f"s_cbranch_scc1 {L0}")
    a("s_branch L_exit")
    a.lab(L1)
    acc_wait(a, False)
    if keep is not None: a(f"s_mov_b32 s{keep}, s70")

def one_lane(a, body):
    L1 = a.newlab("OL")
    a(f"s_cmp_lg_u32 s{sW}, 0"); a(f"s_cbranch_scc1 {L1}")
    a("s_mov_b64 exec, 1")
    body()
    a("s_mov_b64 exec, -1")
    a.lab(L1)

def count_up(a, srdreg, soff, off, vt):
    one_lane(a, lambda: (a(f"v_mov_b32 v{vt}, 1"), a(f"buffer_atomic_add v{vt}, off, {Q(srdreg)}, {soff} offset:{off}")))

def load_w128(a, srdreg, rowstride, soff, perm_cols, dst, tmp=8):
    t = tmp
    a(f"v_lshlrev_b32 v{t}, 2, v3"); a(f"v_xor_b32 v{t}, v{t}, v2"); a(f"v_lshlrev_b32 v{t}, 4, v{t}")
    a(f"s_lshl_b32 s{sT0}, s{sW}, 2"); a(f"v_add_u32 v{t+1}, s{sT0}, v3")
    a(f"s_mov_b32 s{sT1}, {rowstride}"); a(f"v_mul_lo_u32 v{t+1}, v{t+1}, s{sT1}")
    a(f"v_add_u32 v{t}, v{t}, v{t+1}")
    a(f"s_lshl_b32 s{sT2}, s{sW}, 10")
    for i in range(36):
        a(f"s_add_u32 m0, s{sT2}, {i*4096}")
        a(f"s_add_u32 s{sT0}, s{soff}, {i*16*rowstride}")
        a(f"buffer_load_dwordx4 v{t}, {Q(srdreg)}, s{sT0} offen lds")
    a(f"v_lshrrev_b32 v{t+1}, 2, v2")
    a(f"v_lshl_add_u32 v{t+2}, v3, 3, v{t+1}")
    a(f"v_lshlrev_b32 v{t+2}, 8, v{t+2}")
    a(f"v_xor_b32 v{t+1}, s{sW}, v{t+1}")
    a(f"v_lshl_or_b32 v{t+2}, v{t+1}, 6, v{t+2}")
    a(f"v_and_b32 v{t+1}, 3, v2")
    a(f"v_lshl_or_b32 v{t+2}, v{t+1}, {4 if perm_cols else 3}, v{t+2}")
    a(f"v_add_u32 v{t+3}, 0xc000, v{t+2}"); a(f"v_add_u32 v{t+4}, 0x18000, v{t+2}")
    a("s_waitcnt vmcnt(0)")
    a("s_barrier")
    for ks in range(18):
        for tau in range(2):
            f, b = dst(tau, ks)
            for x in range(2):
                off = (ks % 6) * 8192 + x * 1024 + tau * (8 if perm_cols else 32)
                a(f"ds_read_b64_tr_b16 {f}[{b+2*x}:{b+2*x+1}], v{t+2+ks//6} offset:{off}")
    a("s_waitcnt lgkmcnt(0)")
    a("s_barrier")

XB = 36864

def x_setup(a, permrows, vD0, vD1, vRD):
    a("v_lshrrev_b32 v8, 2, v1")
    a("v_and_b32 v9, 3, v1")
    a("v_lshrrev_b32 v10, 5, v1")
    a("v_lshlrev_b32 v11, 1, v10"); a("v_xor_b32 v9, v9, v11")
    if permrows:
        a("v_bfe_u32 v11, v8, 1, 2"); a("v_lshlrev_b32 v11, 2, v11")
        a("v_lshl_or_b32 v11, v10, 4, v11")
        a("v_and_b32 v8, 1, v8"); a("v_or_b32 v8, v8, v11")
        step = 2
    else: step = 16
    a("v_mul_u32_u24 v8, 1152, v8")
    a(f"v_lshl_add_u32 v{vD0}, v9, 4, v8")
    a(f"v_add_u32 v{vD1}, {step*1152}, v{vD0}")
    a("v_lshrrev_b32 v8, 3, v2"); a("v_lshlrev_b32 v8, 1, v8"); a("v_xor_b32 v8, v8, v3")
    a("v_lshlrev_b32 v8, 4, v8")
    a(f"v_lshl_or_b32 v{vRD}, v2, 6, v8")

def x_dma(a, vD0, vD1, sSeg, sLds):
    a(f"s_mul_i32 s{sT0}, s{sSeg}, {32*1152}")
    a(f"s_add_u32 s{sT0}, s{sT0}, s{sXO}")
    a(f"s_mul_i32 s{sT1}, s{sW}, 9216"); a(f"s_add_u32 s{sT1}, s{sT1}, s{sLds}")
    for i in range(9):
        a(f"s_add_u32 m0, s{sT1}, {i*1024}")
        if i: a(f"s_add_u32 s{sT0}, s{sT0}, 64")
        a(f"buffer_load_dwordx4 v{vD0}, {Q(qX)}, s{sT0} offen lds")

WB = 64
def wdst(tau, ks): return ("v", WB + (ks * 2 + tau) * 4)
ACCB = 16
XW = 32

def gemm_seg(a, vRA, w_is_A):
    order = [(ks, rt) for ks in range(18) for rt in range(2)]
    def rd(i):
        ks, rt = order[i]
        a(f"ds_read_b128 {vr(XW + 4*(i % 8), 4)}, v{vRA} offset:{(rt*18 + ks)*1024}")
    for i in range(6): rd(i)
    for i, (ks, rt) in enumerate(order):
        a(f"s_waitcnt lgkmcnt({min(5, 35 - i)})")
        for tau in range(2):
            acc = vr(ACCB + 4 * (rt * 2 + tau), 4); w_ = vr(wdst(tau, ks)[1], 4); x_ = vr(XW + 4 * (i % 8), 4)
            A, B = (w_, x_) if w_is_A else (x_, w_)
            a(f"v_mfma_f32_16x16x32_bf16 {acc}, {A}, {B}, {acc if ks else 0}")
            if tau == 0 and i + 6 < 36: rd(i + 6)

def proj_prologue(a, wptr_off, perm, pfx):
    a(f"s_load_dwordx2 s[4:5], s[0:1], {A_X}")
    a(f"s_load_dwordx2 s[6:7], s[0:1], {wptr_off}")
    a(f"s_load_dwordx2 s[28:29], s[0:1], {WS}")
    lane_vars(a)
    a("s_waitcnt lgkmcnt(0)")
    srd(a, qX, 4, 2359296); srd(a, qW, 6, 4718592); srd(a, qWS, 28, WS_SIZE)
    a(f"s_lshl_b32 s{sT3}, s{sHD}, 8")
    load_w128(a, qW, 8192, sT3, perm, wdst)

def x_pipeline_start(a, permrows):
    x_setup(a, permrows, 5, 6, 7)
    a(f"s_cmp_ge_u32 s{sW}, 2")
    a("s_cselect_b64 vcc, -1, 0")
    a("v_cndmask_b32 v5, v5, v6, vcc")
    a(f"s_and_b32 s{sXO}, s{sW}, 1"); a(f"s_mul_i32 s{sXO}, s{sXO}, {9*64}")
    a(f"s_mov_b32 s{sBUF}, 0")
    a(f"s_mov_b32 s{sT2}, 0"); x_dma(a, 5, 6, sS, sT2)
    a(f"s_add_u32 s{sT3}, s{sS}, s{sSTR}"); a(f"s_mov_b32 s{sT2}, {XB}"); x_dma(a, 5, 6, sT3, sT2)

def x_pipeline_next(a):
    a(f"v_add_u32 v6, s{sBUF}, v7")
    a(f"s_add_u32 s{sT2}, s{sBUF}, {2*XB}")
    a(f"s_cmp_ge_u32 s{sT2}, {3*XB}"); a(f"s_cselect_b32 s{sT3}, {3*XB}, 0"); a(f"s_sub_u32 s{sT2}, s{sT2}, s{sT3}")
    a(f"s_lshl_b32 s{sT3}, s{sSTR}, 1"); a(f"s_add_u32 s{sT3}, s{sT3}, s{sS}")
    x_dma(a, 5, 6, sT3, sT2)
    a(f"s_add_u32 s{sBUF}, s{sBUF}, {XB}")
    a(f"s_cmp_ge_u32 s{sBUF}, {3*XB}"); a(f"s_cselect_b32 s{sBUF}, 0, s{sBUF}")

def gen_P(a, isK, pfx, sc="", sync=False):
    proj_prologue(a, A_WK if isK else A_WV, isK, pfx)
    def signal(val):
        one_lane(a, lambda: (a(f"v_mov_b32 v8, {val}"),
                             a(f"buffer_store_short v8, off, {Q(qWS)}, s46 offset:{0 if isK else 2} sc1")))
    if sync:
        wait_ge(a, qDB, 0, D_INIT, 1, 8)
        a(f"s_lshl_b32 s46, s{sHD}, 7"); a(f"s_add_u32 s46, s46, {FLG}")
    x_pipeline_start(a, isK)
    a("s_waitcnt vmcnt(9)")
    rtime(a, 80)
    a.lab(pfx + "_loop")
    a("s_barrier")
    if sync:
        a(f"s_max_u32 s47, s{sS}, 1"); a("s_sub_u32 s47, s47, 1")
        signal("s47")
    x_pipeline_next(a)
    gemm_seg(a, 6, isK)
    a(f"s_lshl_b32 s{sT0}, s{sS}, 5"); a(f"s_add_u32 s{sT0}, s{sT0}, s{sHD}"); a(f"s_lshl_b32 s{sT0}, s{sT0}, 14")
    a(f"s_add_u32 s{sT0}, s{sT0}, {KVX + (0 if isK else 8192)}"); a(f"s_add_u32 s{sT1}, s{sT0}, 4096")
    for o in range(2):
        q0, q1 = (ACCB + 8 * o, ACCB + 8 * o + 4) if isK else (ACCB + 4 * o, ACCB + 8 + 4 * o)
        d = 8 + 4 * o
        a(f"v_cvt_pk_bf16_f32 v{d}, v{q0}, v{q0+1}"); a(f"v_cvt_pk_bf16_f32 v{d+1}, v{q0+2}, v{q0+3}")
        a(f"v_cvt_pk_bf16_f32 v{d+2}, v{q1}, v{q1+1}"); a(f"v_cvt_pk_bf16_f32 v{d+3}, v{q1+2}, v{q1+3}")
        a(f"buffer_store_dwordx4 {vr(d,4)}, v4, {Q(qWS)}, s{(sT0, sT1)[o]} offen{sc}")
    a(f"s_add_u32 s{sS}, s{sS}, s{sSTR}")
    a("s_waitcnt vmcnt(11)")
    a(f"s_cmp_lt_u32 s{sS}, 64"); a(f"s_cbranch_scc1 {pfx}_loop")
    a("s_waitcnt vmcnt(0)")
    if sync:
        a("s_barrier"); signal(64); a("s_waitcnt vmcnt(0)")
    a("s_branch L_exit")

def gen_QA(a, pfx, sc_in="", sc_out="", sync=False):
    proj_prologue(a, A_WQ, True, pfx)
    x_pipeline_start(a, False)
    QL = 3 * XB
    KI, VI = QL + 8192, QL + 8192 + 2048
    KF = 208
    VF = "a"
    MQ = 240
    vQR, vIW, vTR, vVG, vVM, vQW, vL16 = 244, 245, 246, 247, 248, 249, 250
    mk = [48 + 2 * i for i in range(8)]; mG2 = 64; sC = 66
    a(f"s_and_b32 s{sT0}, s{sW}, 1")
    a(f"s_lshr_b32 s{sT1}, s{sW}, 1")
    a(f"v_lshlrev_b32 v{vL16}, 4, v1")
    a(f"v_add_u32 v{vQW}, {QL}, v4")
    a(f"s_lshl_b32 s{sT2}, s{sT0}, 12"); a(f"s_add_u32 s{sT2}, s{sT2}, {QL}")
    a(f"v_add_u32 v{vQR}, s{sT2}, v{vL16}")
    a(f"s_lshl_b32 s{sT2}, s{sW}, 9"); a(f"s_add_u32 s{sT2}, s{sT2}, {KI}")
    a("v_lshlrev_b32 v8, 4, v2"); a("v_lshl_or_b32 v8, v3, 2, v8"); a(f"v_add_u32 v{vIW}, s{sT2}, v8")
    a("v_lshrrev_b32 v8, 2, v2"); a("v_lshl_add_u32 v8, v3, 3, v8"); a("v_lshlrev_b32 v8, 4, v8")
    a("v_and_b32 v9, 1, v2"); a("v_lshl_or_b32 v8, v9, 3, v8"); a(f"v_add_u32 v{vTR}, {KI}, v8")
    a("v_lshrrev_b32 v8, 2, v2"); a("v_and_b32 v9, 3, v2"); a("v_lshl_or_b32 v10, v8, 3, v9")
    a("v_and_b32 v11, 1, v3"); a("v_lshlrev_b32 v12, 4, v10"); a("v_lshl_or_b32 v12, v11, 3, v12")
    a(f"s_lshl_b32 s{sT2}, s{sT1}, 10"); a(f"s_add_u32 s{sT2}, s{sT2}, {VI}"); a(f"v_add_u32 v{vVM}, s{sT2}, v12")
    a("v_and_b32 v12, 15, v10"); a("v_lshl_or_b32 v12, v11, 5, v12"); a("v_lshlrev_b32 v12, 4, v12")
    a("v_lshrrev_b32 v11, 1, v3"); a("v_lshl_or_b32 v12, v11, 3, v12")
    a("v_lshrrev_b32 v11, 3, v2"); a("v_lshl_or_b32 v12, v11, 12, v12")
    a(f"s_lshl_b32 s{sT2}, s{sT1}, 11"); a(f"v_add_u32 v{vVG}, s{sT2}, v12")
    a(f"s_lshl_b32 s{sT2}, s{sT0}, 4"); a(f"v_add_u32 v8, s{sT2}, v2")
    a("v_lshlrev_b32 v9, 3, v3"); a("v_sub_u32 v8, v8, v9")
    for t in range(2):
        for r in range(4):
            a(f"v_cmp_le_i32 s[{mk[t*4+r]}:{mk[t*4+r]+1}], {4*(r>>1) + 2*t + (r&1)}, v8")
    a(f"v_cmp_gt_u32 s[{mG2}:{mG2+1}], 2, v3")
    a(f"s_mov_b32 s{sC}, {f32bits((128 ** -0.5) * math.log2(math.e)):#x}")
    a(f"s_mov_b32 s67, 0xff800000")
    a(f"s_lshl_b32 s46, s{sT0}, 12"); a(f"s_lshl_b32 s{sT2}, s{sT1}, 11"); a(f"s_add_u32 s46, s46, s{sT2}")
    if sync:
        wait_ge(a, qDB, 0, D_INIT, 1, 8)
        a(f"s_lshl_b32 s72, s{sHD}, 7"); a(f"s_add_u32 s72, s72, {FLG}"); a("s_add_u32 s73, s72, 4096")
        a(f"s_mov_b32 s{sKVP}, 0")
    a("s_waitcnt vmcnt(9)")
    a("s_barrier")
    rtime(a, 80)
    a.lab(pfx + "_loop")
    if sync:
        a(f"s_add_u32 s74, s{sS}, 1")
        a(f"s_cmp_ge_u32 s{sKVP}, s74"); a(f"s_cbranch_scc1 {pfx}_kvok")
        wait_ge(a, qWS, "s72", 0, "s74", 8, halves=True, keep=sKVP)
        a.lab(pfx + "_kvok")
    a(f"s_lshl_b32 s{sT0}, s{sS}, 5"); a(f"s_add_u32 s47, s{sT0}, s{sHD}")
    a(f"s_lshl_b32 s{sT0}, s47, 14"); a(f"s_add_u32 s{sT0}, s{sT0}, {KVX}")
    a(f"s_add_u32 s{sT1}, s{sT0}, 4096"); a(f"s_add_u32 s{sT2}, s{sT0}, 8192")
    a(f"s_lshl_b32 s75, s47, 12"); a(f"s_add_u32 s75, s75, {KVM}")
    if not sync: a(f"buffer_load_dwordx4 {vr(MQ,4)}, v4, {Q(qWS)}, s75 offen{sc_in}")
    for t in range(2):
        for ks in range(4):
            a(f"buffer_load_dwordx4 {vr(KF + 16*t + 4*ks, 4)}, v{vL16}, {Q(qWS)}, s{(sT0, sT1)[t]} offen offset:{ks*1024}{sc_in}")
    for kk in range(2):
        for tp in range(2):
            for y in range(2):
                b = (kk * 2 + tp) * 4 + 2 * y
                a(f"buffer_load_dwordx2 a[{b}:{b+1}], v{vVG}, {Q(qWS)}, s{sT2} offen offset:{kk*1024 + tp*64 + y*256}{sc_in}")
    x_pipeline_next(a)
    gemm_seg(a, 6, True)
    for rt in range(2):
        q0, q1 = ACCB + 8 * rt, ACCB + 8 * rt + 4
        d = 8 + 4 * rt
        a(f"v_cvt_pk_bf16_f32 v{d}, v{q0}, v{q0+1}"); a(f"v_cvt_pk_bf16_f32 v{d+1}, v{q0+2}, v{q0+3}")
        a(f"v_cvt_pk_bf16_f32 v{d+2}, v{q1}, v{q1+1}"); a(f"v_cvt_pk_bf16_f32 v{d+3}, v{q1+2}, v{q1+3}")
        a(f"ds_write_b128 v{vQW}, {vr(d,4)} offset:{rt*4096}")
    if sync:
        wait_ge(a, qWS, "s73", 0, "s74", MQ, sleep=1)
        a(f"buffer_load_dwordx4 {vr(MQ,4)}, v4, {Q(qWS)}, s75 offen{sc_in}")
        a("s_waitcnt vmcnt(0)")
    else: a("s_waitcnt vmcnt(9)")
    a(f"ds_write_b32 v{vIW}, v{MQ+1}"); a(f"ds_write_b32 v{vIW}, v{MQ+2} offset:256")
    a(f"ds_write_b32 v{vIW}, v{MQ} offset:2048"); a(f"ds_write_b32 v{vIW}, v{MQ+3} offset:{2048+256}")
    a("s_waitcnt lgkmcnt(0)")
    a("s_barrier")
    QF = XW
    for ks in range(4): a(f"ds_read_b128 {vr(QF+4*ks,4)}, v{vQR} offset:{ks*1024}")
    for ks in range(4):
        for x in range(2): a(f"ds_read_b64_tr_b16 a[{24+4*ks+2*x}:{25+4*ks+2*x}], v{vTR} offset:{ks*512 + x*64}")
    for kk in range(2):
        for tp in range(2):
            b = 16 + (kk * 2 + tp) * 2
            a(f"ds_read_b64 a[{b}:{b+1}], v{vVM} offset:{kk*512 + tp*64}")
    a("s_waitcnt lgkmcnt(0)")
    T0, T1, TM = 16, 20, 24
    for ks in range(4):
        for T, A in ((T0, vr(KF + 4*ks, 4)), (T1, vr(KF + 16 + 4*ks, 4)), (TM, f"a[{24+4*ks}:{27+4*ks}]")):
            a(f"v_mfma_f32_16x16x32_bf16 {vr(T,4)}, {A}, {vr(QF+4*ks,4)}, {vr(T,4) if ks else 0}")
    a("v_mov_b32 v28, s67")
    for i in range(8): a(f"v_cndmask_b32 v{T0+i}, v28, v{T0+i}, s[{mk[i]}:{mk[i]+1}]")
    for i in range(4): a(f"v_cndmask_b32 v{TM+i}, v28, v{TM+i}, s[{mG2}:{mG2+1}]")
    a("v_max3_f32 v29, v16, v17, v18")
    for i in range(19, 27, 2): a(f"v_max3_f32 v29, v29, v{i}, v{i+1}")
    a("v_max_f32 v29, v29, v27")
    def xl(op):
        for sw in ("16", "32"):
            a("v_mov_b32 v30, v29"); a(f"v_permlane{sw}_swap_b32 v30, v29"); a(f"{op} v29, v30, v29")
    xl("v_max_f32")
    a(f"v_mul_f32 v29, s{sC}, v29")
    for i in range(16, 28): a(f"v_fma_f32 v{i}, v{i}, s{sC}, -v29")
    for i in range(16, 28): a(f"v_exp_f32 v{i}, v{i}")
    a("v_add_f32 v29, v16, v17")
    for i in range(18, 28): a(f"v_add_f32 v29, v29, v{i}")
    xl("v_add_f32")
    a("v_rcp_f32 v29, v29")
    for i in range(16, 28): a(f"v_mul_f32 v{i}, v{i}, v29")
    a("v_cvt_pk_bf16_f32 v8, v16, v17"); a("v_cvt_pk_bf16_f32 v9, v20, v21")
    a("v_cvt_pk_bf16_f32 v10, v18, v19"); a("v_cvt_pk_bf16_f32 v11, v22, v23")
    a("v_cvt_pk_bf16_f32 v12, v24, v25"); a("v_cvt_pk_bf16_f32 v13, v26, v27")
    for j in range(4):
        a(f"v_mfma_f32_16x16x32_bf16 {vr(48+4*j,4)}, a[{4*j}:{4*j+3}], v[8:11], 0")
    for j in range(4):
        a(f"v_mfma_f32_16x16x16_bf16 {vr(48+4*j,4)}, a[{16+2*j}:{17+2*j}], v[12:13], {vr(48+4*j,4)}")
    a(f"s_lshl_b32 s{sT0}, s47, 13"); a(f"s_add_u32 s{sT0}, s{sT0}, s46"); a(f"s_add_u32 s{sT0}, s{sT0}, {OBUF}")
    for kk in range(2):
        q0 = 48 + 8 * kk; d = 16 + 4 * kk
        for i in range(4): a(f"v_cvt_pk_bf16_f32 v{d+i}, v{q0+2*i}, v{q0+2*i+1}")
        a(f"buffer_store_dwordx4 {vr(d,4)}, v{vL16}, {Q(qWS)}, s{sT0} offen offset:{kk*1024}{sc_out}")
    if sync: a("s_waitcnt vmcnt(0)")
    a("s_barrier")
    if sync:
        a(f"s_lshl_b32 s{sT0}, s{sS}, 7"); a(f"s_add_u32 s{sT0}, s{sT0}, {FLG + 8192}")
        count_up(a, qWS, f"s{sT0}", 0, 8)
    a(f"s_add_u32 s{sS}, s{sS}, s{sSTR}")
    a(f"s_cmp_lt_u32 s{sS}, 64"); a(f"s_cbranch_scc1 {pfx}_loop")
    a("s_waitcnt vmcnt(0)")
    a("s_branch L_exit")

def bf_round(a, r):
    a(f"v_cvt_pk_bf16_f32 v{r}, v{r}, v{r}"); a(f"v_and_b32 v{r}, 0xffff0000, v{r}")

def sigmoid(a, r, sL):
    a(f"v_mul_f32 v{r}, s{sL}, v{r}"); a(f"v_exp_f32 v{r}, v{r}"); a(f"v_add_f32 v{r}, 1.0, v{r}"); a(f"v_rcp_f32 v{r}, v{r}")

def gen_WO(a, pfx, sc_in="", sync=False):
    a(f"s_load_dwordx2 s[4:5], s[0:1], {A_X}")
    a(f"s_load_dwordx2 s[6:7], s[0:1], {A_WO}")
    a(f"s_load_dwordx2 s[28:29], s[0:1], {WS}")
    a(f"s_load_dwordx2 s[30:31], s[0:1], {OUT}")
    lane_vars(a)
    a("s_waitcnt lgkmcnt(0)")
    srd(a, qX, 4, 2359296); srd(a, qW, 6, 4718592); srd(a, qWS, 28, WS_SIZE); srd(a, qOUT, 30, 2359296)
    a("v_lshrrev_b32 v8, 2, v1"); a("v_mul_u32_u24 v8, 1152, v8")
    a("v_and_b32 v9, 3, v1"); a("v_lshl_add_u32 v8, v9, 4, v8")
    a(f"s_mul_i32 s{sT2}, s{sW}, {1024*1152}"); a(f"s_lshl_b32 s{sT0}, s{sHD}, 6"); a(f"s_add_u32 s{sT2}, s{sT2}, s{sT0}")
    a(f"s_lshl_b32 s{sT3}, s{sW}, 15")
    a("v_lshrrev_b32 v9, 2, v2"); a("v_lshl_add_u32 v9, v3, 3, v9"); a("v_lshlrev_b32 v9, 6, v9")
    a("v_and_b32 v10, 3, v2"); a("v_lshl_or_b32 v9, v10, 4, v9"); a(f"v_add_u32 v9, s{sT3}, v9")
    for hf in range(2):
        for i in range(32):
            a(f"s_add_u32 m0, s{sT3}, {i*1024}")
            a(f"s_add_u32 s{sT0}, s{sT2}, {(hf*512 + i*16)*1152}")
            a(f"buffer_load_dwordx4 v8, {Q(qW)}, s{sT0} offen lds")
        a("s_waitcnt vmcnt(0)")
        for ks in range(16):
            for tau in range(2):
                b = ((hf * 16 + ks) * 2 + tau) * 4
                for x in range(2):
                    a(f"ds_read_b64_tr_b16 a[{b+2*x}:{b+2*x+1}], v9 offset:{ks*2048 + x*256 + tau*8}")
        a("s_waitcnt lgkmcnt(0)")
    a("s_barrier")
    vL16, vRW, vRR, vXO_, vROW = 5, 6, 7, 8, 9
    a(f"v_lshlrev_b32 v{vL16}, 4, v1")
    a(f"s_lshl_b32 s{sT0}, s{sW}, 12"); a(f"v_add_u32 v{vRW}, s{sT0}, v{vL16}")
    a(f"s_and_b32 s{sT0}, s{sW}, 1"); a(f"s_lshr_b32 s{sT1}, s{sW}, 1")
    a(f"s_lshl_b32 s{sT2}, s{sT0}, 1"); a(f"s_add_u32 s{sT2}, s{sT2}, s{sT1}"); a(f"s_lshl_b32 s{sT2}, s{sT2}, 10")
    a(f"v_add_u32 v{vRR}, s{sT2}, v{vL16}")
    a(f"s_lshl_b32 s{sT2}, s{sT0}, 4"); a(f"v_add_u32 v{vROW}, s{sT2}, v2")
    a(f"s_lshl_b32 s{sT2}, s{sHD}, 6"); a(f"s_lshl_b32 s{sT3}, s{sT1}, 3"); a(f"s_add_u32 s{sT2}, s{sT2}, s{sT3}")
    a("v_lshlrev_b32 v10, 4, v3"); a(f"v_add_u32 v10, s{sT2}, v10")
    a(f"v_mul_u32_u24 v{vXO_}, 1152, v{vROW}"); a(f"v_add_u32 v{vXO_}, v{vXO_}, v10")
    if sync:
        wait_ge(a, qDB, 0, D_INIT, 1, 11)
        wait_ge(a, qDB, 0, D_YS, 8, 11, sleep=16)
    a("v_lshlrev_b32 v11, 2, v1")
    a(f"s_mov_b32 s{sT0}, {BROW}")
    a(f"buffer_load_dword v11, v11, {Q(qWS)}, s{sT0} offen{sc_in}")
    a("s_waitcnt vmcnt(0)")
    for j in range(8): a(f"v_readlane_b32 s{48+j}, v11, {j}")
    OW, NW = 64, 48
    rtime(a, 80)
    a.lab(pfx + "_loop")
    a(f"s_lshl_b32 s{sT0}, s{sS}, 18"); a(f"s_lshl_b32 s{sT1}, s{sW}, 16"); a(f"s_add_u32 s46, s{sT0}, s{sT1}")
    a(f"s_add_u32 s46, s46, {OBUF}")
    a(f"s_lshl_b32 s{sT0}, s{sS}, 5"); a(f"v_add_u32 v12, s{sT0}, v{vROW}")
    a("v_lshlrev_b32 v13, 2, v12")
    a(f"s_mov_b32 s{sT1}, {RG + 8192}")
    a(f"buffer_load_dword v13, v13, {Q(qWS)}, s{sT1} offen{sc_in}")
    a(f"s_mul_i32 s47, s{sS}, {32*1152}")
    a(f"buffer_load_dwordx2 v[14:15], v{vXO_}, {Q(qX)}, s47 offen")
    a("v_mov_b32 v32, -1")
    for j in range(8):
        a(f"v_cmp_eq_u32 vcc, s{48+j}, v12"); a(f"v_mov_b32 v33, {j*1152}"); a("v_cndmask_b32 v32, v32, v33, vcc")
    a("v_cmp_ne_u32 s[56:57], -1, v32")
    a("v_add_u32 v33, v32, v10"); a("v_cndmask_b32 v33, v10, v33, s[56:57]")
    a(f"s_mov_b32 s{sT1}, {BROW + 64}")
    a(f"buffer_load_dwordx2 v[34:35], v33, {Q(qWS)}, s{sT1} offen{sc_in}")
    if sync:
        a(f"s_lshl_b32 s72, s{sS}, 7"); a(f"s_add_u32 s72, s72, {FLG + 8192}")
        wait_ge(a, qWS, "s72", 0, 32, 36, sleep=3)
    order = [(hh, rt, ks) for hh in range(8) for ks in range(4) for rt in range(2)]
    def ld(i):
        hh, rt, ks = order[i]
        if rt == 0 and ks == 0: pass
        a(f"s_add_u32 s{sT0}, s46, {hh*8192 + rt*4096}")
        a(f"buffer_load_dwordx4 {vr(OW + 4*(i % NW), 4)}, v{vL16}, {Q(qWS)}, s{sT0} offen offset:{ks*1024}{sc_in}")
    for i in range(NW): ld(i)
    for i, (hh, rt, ks) in enumerate(order):
        issued = min(64, NW + i)
        a(f"s_waitcnt vmcnt({issued - 1 - i})")
        for tau in range(2):
            acc = vr(16 + 4 * (rt * 2 + tau), 4); b = ((hh * 4 + ks) * 2 + tau) * 4
            a(f"v_mfma_f32_16x16x32_bf16 {acc}, a[{b}:{b+3}], {vr(OW + 4*(i % NW), 4)}, {acc if i >= 2 else 0}")
        if i + NW < 64: ld(i + NW)
    a("s_barrier")
    for q_ in range(4): a(f"ds_write_b128 v{vRW}, {vr(16+4*q_,4)} offset:{q_*1024}")
    a("s_waitcnt lgkmcnt(0)")
    a("s_barrier")
    for w_ in range(4): a(f"ds_read_b128 {vr(16+4*w_,4)}, v{vRR} offset:{w_*4096}")
    a("v_cndmask_b32 v14, v14, v34, s[56:57]"); a("v_cndmask_b32 v15, v15, v35, s[56:57]")
    a("v_sub_f32 v36, 1.0, v13"); bf_round(a, 36)
    a("v_lshlrev_b32 v40, 16, v14"); a("v_and_b32 v41, 0xffff0000, v14")
    a("v_lshlrev_b32 v42, 16, v15"); a("v_and_b32 v43, 0xffff0000, v15")
    for i in range(4):
        a(f"v_mul_f32 v{40+i}, v36, v{40+i}"); bf_round(a, 40 + i)
    a("s_waitcnt lgkmcnt(0)")
    for i in range(4):
        a(f"v_add_f32 v{16+i}, v{16+i}, v{20+i}"); a(f"v_add_f32 v{24+i}, v{24+i}, v{28+i}")
        a(f"v_add_f32 v{16+i}, v{16+i}, v{24+i}"); bf_round(a, 16 + i)
        a(f"v_mul_f32 v{16+i}, v13, v{16+i}"); bf_round(a, 16 + i)
        a(f"v_add_f32 v{16+i}, v{16+i}, v{40+i}")
    a("v_cvt_pk_bf16_f32 v44, v16, v17"); a("v_cvt_pk_bf16_f32 v45, v18, v19")
    a(f"buffer_store_dwordx2 v[44:45], v{vXO_}, {Q(qOUT)}, s47 offen")
    a(f"s_add_u32 s{sS}, s{sS}, s{sSTR}")
    a(f"s_cmp_lt_u32 s{sS}, 64"); a(f"s_cbranch_scc1 {pfx}_loop")
    a("s_waitcnt vmcnt(0)")
    a("s_branch L_exit")

def gen_RG(a, pfx, sc=""):
    a(f"s_load_dwordx2 s[4:5], s[0:1], {A_X}")
    a(f"s_load_dwordx2 s[6:7], s[0:1], {B_WR}")
    a(f"s_load_dwordx2 s[28:29], s[0:1], {WS}")
    a(f"s_load_dwordx2 s[30:31], s[0:1], {GATE}")
    lane_vars(a)
    a("s_waitcnt lgkmcnt(0)")
    srd(a, qX, 4, 2359296); srd(a, qW, 6, 1152); srd(a, qWS, 28, WS_SIZE); srd(a, qAUX, 30, 1152)
    a("v_lshlrev_b32 v5, 4, v3")
    a(f"s_lshl_b32 s{sT0}, s{sHD}, 6"); a(f"s_lshl_b32 s{sT1}, s{sW}, 4"); a(f"s_add_u32 s{sT0}, s{sT0}, s{sT1}")
    a(f"v_add_u32 v6, s{sT0}, v2")
    a("v_mul_u32_u24 v7, 1152, v6"); a("v_add_u32 v7, v7, v5")
    for ks in range(18):
        a(f"buffer_load_dwordx4 {vr(16+4*ks,4)}, v7, {Q(qX)}, 0 offen offset:{ks*64}")
        a(f"buffer_load_dwordx4 {vr(88+4*ks,4)}, v5, {Q(qW)}, 0 offen offset:{ks*64}")
        a(f"buffer_load_dwordx4 {vr(160+4*ks,4)}, v5, {Q(qAUX)}, 0 offen offset:{ks*64}")
    a("s_waitcnt vmcnt(0)")
    for ks in range(18):
        a(f"v_mfma_f32_16x16x32_bf16 v[8:11], {vr(88+4*ks,4)}, {vr(16+4*ks,4)}, {'v[8:11]' if ks else 0}")
        a(f"v_mfma_f32_16x16x32_bf16 v[12:15], {vr(160+4*ks,4)}, {vr(16+4*ks,4)}, {'v[12:15]' if ks else 0}")
    a(f"s_mov_b32 s{sT2}, {f32bits(-math.log2(math.e)):#x}")
    bf_round(a, 8); bf_round(a, 12); sigmoid(a, 12, sT2); bf_round(a, 12)
    a("v_lshlrev_b32 v6, 2, v6")
    a("s_mov_b64 exec, 0xffff")
    a(f"s_mov_b32 s{sT0}, {RG}"); a(f"s_mov_b32 s{sT1}, {RG + 8192}")
    a(f"buffer_store_dword v8, v6, {Q(qWS)}, s{sT0} offen{sc}")
    a(f"buffer_store_dword v12, v6, {Q(qWS)}, s{sT1} offen{sc}")
    a("s_mov_b64 exec, -1")
    a("s_waitcnt vmcnt(0)")

def top8(a, sc_in=""):
    a("v_lshlrev_b32 v8, 4, v1")
    a(f"s_mov_b32 s{sT0}, {RG}"); a(f"s_mov_b32 s{sT1}, {RG + 4096}")
    for j in range(8):
        a(f"buffer_load_dwordx4 {vr(16+4*j,4)}, v8, {Q(qWS)}, s{(sT0, sT1)[j>>2]} offen offset:{(j&3)*1024}{sc_in}")
    a("v_lshlrev_b32 v9, 2, v1"); a("v_sub_u32 v9, 2047, v9")
    a("s_waitcnt vmcnt(0)")
    for j in range(32):
        r = 16 + j
        a(f"v_ashrrev_i32 v10, 31, v{r}"); a("v_or_b32 v10, 0x80000000, v10")
        a(f"v_xor_b32 v{r}, v{r}, v10"); a(f"v_and_b32 v{r}, 0xffff0000, v{r}")
        a(f"v_subrev_u32 v10, {(j >> 2) * 256 + (j & 3)}, v9"); a(f"v_or_b32 v{r}, v{r}, v10")
    for k in range(8):
        a("v_max3_u32 v48, v16, v17, v18")
        for i in range(19, 47, 2): a(f"v_max3_u32 v48, v48, v{i}, v{i+1}")
        a("v_max_u32 v48, v48, v47")
        for mod in ("quad_perm:[1,0,3,2]", "quad_perm:[2,3,0,1]", "row_half_mirror", "row_mirror"):
            a(f"v_max_u32_dpp v48, v48, v48 {mod} row_mask:0xf bank_mask:0xf")
        for sw in ("16", "32"):
            a("v_mov_b32 v49, v48"); a(f"v_permlane{sw}_swap_b32 v49, v48"); a("v_max_u32 v48, v49, v48")
        a(f"v_readfirstlane_b32 s{48+k}, v48")
        if k < 7:
            for j in range(32):
                a(f"v_cmp_ne_u32 vcc, v48, v{16+j}"); a(f"v_cndmask_b32 v{16+j}, 0, v{16+j}, vcc")

def rows_from_keys(a, vdst):
    a(f"v_mov_b32 v{vdst}, s48")
    a("v_and_b32 v10, 7, v2")
    for j in range(1, 8):
        a(f"v_cmp_eq_u32 vcc, {j}, v10"); a(f"v_mov_b32 v11, s{48+j}"); a(f"v_cndmask_b32 v{vdst}, v{vdst}, v11, vcc")

def gen_FFN(a, pfx, sc_in="", sc_out="", sync=False):
    a(f"s_load_dwordx2 s[4:5], s[0:1], {A_X}")
    a(f"s_load_dwordx4 s[28:31], s[0:1], {B_WG}")
    a(f"s_load_dwordx2 s[6:7], s[0:1], {B_WD}")
    a(f"s_load_dwordx2 s[46:47], s[0:1], {WS}")
    lane_vars(a)
    a("s_waitcnt lgkmcnt(0)")
    srd(a, qX, 4, 2359296); srd(a, qW, 28, 5308416); srd(a, qAUX, 30, 5308416); srd(a, qOUT, 6, 5308416); srd(a, qWS, 46, WS_SIZE)
    a(f"s_lshl_b32 s46, s{sHD}, 8")
    load_w128(a, qW, 9216, 46, True, lambda tau, ks: ("a", (ks * 2 + tau) * 4))
    load_w128(a, qAUX, 9216, 46, True, lambda tau, ks: ("v", 112 + (ks * 2 + tau) * 4))
    a(f"s_mul_i32 s46, s{sHD}, {128*1152}")
    a(f"s_lshl_b32 s{sT2}, s{sW}, 10")
    for i in range(36):
        a(f"s_add_u32 m0, s{sT2}, {i*4096}")
        a(f"s_add_u32 s{sT0}, s46, {i*4096}")
        a(f"buffer_load_dwordx4 v4, {Q(qOUT)}, s{sT0} offen lds")
    if sync: wait_ge(a, qDB, 0, D_RG, 32, 8, sleep=4)
    top8(a, sc_in)
    rows_from_keys(a, 5)
    a("v_and_b32 v5, 0xffff, v5"); a("v_sub_u32 v5, 2047, v5")
    a("v_mul_u32_u24 v5, 1152, v5"); a("v_lshl_add_u32 v5, v3, 4, v5")
    for ks in range(18): a(f"buffer_load_dwordx4 {vr(32+4*ks,4)}, v5, {Q(qX)}, 0 offen offset:{ks*64}")
    a("s_waitcnt vmcnt(0)")
    for ks in range(18):
        for tau in range(2):
            b = (ks * 2 + tau) * 4
            a(f"v_mfma_f32_16x16x32_bf16 {vr(16+4*tau,4)}, a[{b}:{b+3}], {vr(32+4*ks,4)}, {vr(16+4*tau,4) if ks else 0}")
            a(f"v_mfma_f32_16x16x32_bf16 {vr(24+4*tau,4)}, {vr(112+b,4)}, {vr(32+4*ks,4)}, {vr(24+4*tau,4) if ks else 0}")
    a(f"s_mov_b32 s{sT2}, {f32bits(-math.log2(math.e)):#x}")
    for i in range(8):
        bf_round(a, 16 + i); bf_round(a, 24 + i)
        a(f"v_mov_b32 v8, v{16+i}"); sigmoid(a, 8, sT2)
        a(f"v_mul_f32 v{16+i}, v{16+i}, v8"); bf_round(a, 16 + i)
        a(f"v_mul_f32 v{16+i}, v{16+i}, v{24+i}")
    for i in range(4): a(f"v_cvt_pk_bf16_f32 v{8+i}, v{16+2*i}, v{17+2*i}")
    HL = 147456
    a(f"v_add_u32 v6, {HL}, v4")
    a("ds_write_b128 v6, v[8:11]")
    a("s_waitcnt lgkmcnt(0)")
    a("s_barrier")
    a("v_lshlrev_b32 v6, 4, v1"); a(f"v_add_u32 v6, {HL}, v6")
    for ks in range(4): a(f"ds_read_b128 {vr(16+4*ks,4)}, v6 offset:{ks*1024}")
    a("v_lshrrev_b32 v7, 2, v2"); a("v_lshl_add_u32 v7, v3, 3, v7"); a("v_mul_u32_u24 v7, 1152, v7")
    a("v_and_b32 v8, 3, v2"); a("v_lshl_add_u32 v7, v8, 3, v7")
    a(f"s_mul_i32 s{sT0}, s{sW}, 288"); a(f"v_add_u32 v7, s{sT0}, v7")
    for ks in range(1, 4): a(f"v_add_u32 v{11+ks}, {ks*32*1152}, v7")
    for t in range(9):
        for ks in range(4):
            for x in range(2):
                b = 112 + (t * 4 + ks) * 4 + 2 * x
                a(f"ds_read_b64_tr_b16 {vr(b,2)}, v{7 if ks == 0 else 11+ks} offset:{x*4*1152 + t*32}")
    a("s_waitcnt lgkmcnt(0)")
    for t in range(9):
        for ks in range(4):
            a(f"v_mfma_f32_16x16x32_bf16 {vr(32+4*t,4)}, {vr(112+(t*4+ks)*4,4)}, {vr(16+4*ks,4)}, {vr(32+4*t,4) if ks else 0}")
    a("v_mul_u32_u24 v6, 2304, v2"); a("v_lshl_add_u32 v6, v3, 4, v6")
    a(f"s_mul_i32 s{sT0}, s{sHD}, 18432"); a(f"s_mul_i32 s{sT1}, s{sW}, 576"); a(f"s_add_u32 s{sT0}, s{sT0}, s{sT1}")
    a(f"s_add_u32 s{sT0}, s{sT0}, {YP}")
    a("v_cmp_gt_u32 vcc, 8, v2")
    a("s_mov_b64 exec, vcc")
    for t in range(9): a(f"buffer_store_dwordx4 {vr(32+4*t,4)}, v6, {Q(qWS)}, s{sT0} offen offset:{t*64}{sc_out}")
    a("s_mov_b64 exec, -1")
    a("s_waitcnt vmcnt(0)")

def gen_YS(a, pfx, sc_in="", sc_out=""):
    a(f"s_load_dwordx2 s[4:5], s[0:1], {A_X}")
    a(f"s_load_dwordx2 s[28:29], s[0:1], {WS}")
    lane_vars(a)
    a("s_waitcnt lgkmcnt(0)")
    srd(a, qX, 4, 2359296); srd(a, qWS, 28, WS_SIZE)
    a(f"s_mul_i32 s46, s{sHD}, 2304"); a(f"s_add_u32 s46, s46, {YP}")
    a("v_min_u32 v5, 143, v0"); a("v_lshlrev_b32 v6, 4, v5")
    for j in range(36):
        a(f"s_add_u32 s{sT0}, s46, {j*18432}")
        a(f"buffer_load_dwordx4 {vr(64+4*j,4)}, v6, {Q(qWS)}, s{sT0} offen{sc_in}")
    top8(a, sc_in)
    a("s_mov_b32 s47, s48")
    for j in range(1, 8):
        a(f"s_cmp_eq_u32 s{sHD}, {j}"); a(f"s_cselect_b32 s47, s{48+j}, s47")
    a(f"s_and_b32 s{sT0}, s47, 0xffff"); a(f"s_sub_u32 s{sT3}, 2047, s{sT0}")
    a(f"s_mul_i32 s{sT0}, s{sT3}, 1152")
    a("v_lshlrev_b32 v7, 3, v5")
    a(f"buffer_load_dwordx2 v[8:9], v7, {Q(qX)}, s{sT0} offen")
    a(f"s_lshl_b32 s{sT1}, s{sT3}, 2"); a(f"s_add_u32 s{sT1}, s{sT1}, {RG}")
    a("v_mov_b32 v10, 0")
    a(f"buffer_load_dword v10, v10, {Q(qWS)}, s{sT1} offen{sc_in}")
    for j in range(1, 36):
        for i in range(4): a(f"v_add_f32 v{64+i}, v{64+i}, v{64+4*j+i}")
    a("s_waitcnt vmcnt(0)")
    a(f"s_mov_b32 s{sT2}, {f32bits(-math.log2(math.e)):#x}")
    sigmoid(a, 10, sT2); bf_round(a, 10)
    a("v_lshlrev_b32 v12, 16, v8"); a("v_and_b32 v13, 0xffff0000, v8")
    a("v_lshlrev_b32 v14, 16, v9"); a("v_and_b32 v15, 0xffff0000, v9")
    for i in range(4):
        bf_round(a, 64 + i); a(f"v_mul_f32 v{64+i}, v{64+i}, v10"); bf_round(a, 64 + i)
        a(f"v_add_f32 v{64+i}, v{64+i}, v{12+i}")
    a("v_cvt_pk_bf16_f32 v8, v64, v65"); a("v_cvt_pk_bf16_f32 v9, v66, v67")
    a(f"s_mul_i32 s{sT0}, s{sHD}, 1152"); a(f"s_add_u32 s{sT0}, s{sT0}, {BROW + 64}")
    a(f"buffer_store_dwordx2 v[8:9], v7, {Q(qWS)}, s{sT0} offen{sc_out}")
    a(f"v_mov_b32 v10, s{sT3}"); a("v_mov_b32 v11, 0")
    a(f"s_lshl_b32 s{sT0}, s{sHD}, 2"); a(f"s_add_u32 s{sT0}, s{sT0}, {BROW}")
    a(f"buffer_store_dword v10, v11, {Q(qWS)}, s{sT0} offen{sc_out}")
    a("s_waitcnt vmcnt(0)")
```

```python
from asmlib import *
from layout import *
import re

class Cnt:
    def __init__(self, a, name, maxn):
        self.a = a; self.name = name; self.maxn = maxn; self.q = []
    def issue(self, tag): self.q.append(tag)
    def wait(self, tag):
        idx = max(i for i, t in enumerate(self.q) if t == tag)
        n = len(self.q) - 1 - idx
        self.a(f"s_waitcnt {self.name}({min(n, self.maxn)})")
        self.q = self.q[idx + 1:] if n <= self.maxn else self.q[-self.maxn:]
    def wait_all(self):
        self.a(f"s_waitcnt {self.name}(0)"); self.q = []

def vr(b, n): return f"v[{b}:{b+n-1}]"

def srd(a, d, lo, size):
    a(f"s_mov_b32 s{d}, s{lo}")
    a(f"s_and_b32 s{d+1}, s{lo+1}, 0xffff")
    a(f"s_mov_b32 s{d+2}, {size:#x}")
    a(f"s_mov_b32 s{d+3}, 0x20000")

vIDX, vMS, vM1, vM2, vM3, vWA0, vWA1, vXq, vXk, vXR, vXO, vJ = range(12)
F = [12, 16, 20, 24, 28, 32]
AQ0, AQ1, AK0, AK1 = 36, 40, 44, 48
ST = 52
KX0, KX1 = 68, 72
E = 76
sWS, sWQ, sWK, sWV, sWO, sM0, sDB = 8, 12, 16, 20, 24, 28, 32
sW, sH, sS, sTAG = 36, 37, 38, 39
mP, mN6, mL18, mS0, mS1, mS2, mODD = 40, 42, 44, 46, 48, 50, 52
sKV0, sKV1, sKV2, sKV3 = 54, 55, 56, 57
sKVM, sPSo, sPLo, sMOo, sMI0, sMI1, sMI2, sARM, sPF = 58, 59, 60, 61, 62, 63, 64, 65, 66
sC = 68
sT0, sT1, sT2, sT3 = 70, 71, 72, 73
sSPIN = 74
sTS = 76
mLO = 96
sONE = 98
sMOb, sMIb, sARb = 100, 101, 67
SLOT = 16384
RXCD = 9
sFL, sKVP, sFR = 4, 5, 6

CH = lambda j: 16384 * (j + 1)
RES = [("q", 0), ("k", 0), ("q", 3), ("q", 7), ("k", 2), ("k", 3), ("k", 8), ("o", 1), ("o", 8)]
ALLCH = [(m, p) for m in "qkv" for p in range(9)] + [("o", t) for t in range(9)]
REGCH = [c for c in ALLCH if c not in RES]
assert len(REGCH) == 27
WREG = {}
_n = 0
for c in REGCH:
    for tau in range(2):
        if _n < 22: WREG[c + (tau,)] = ("v", 80 + 8 * _n)
        else: WREG[c + (tau,)] = ("a", 8 * (_n - 22))
        _n += 1
def wr(c, tau):
    f, b = WREG[c + (tau,)]; return f"{f}[{b}:{b+7}]"

def gen_R(a, tstamp=False, sc_out="", nsteps=64, d1=0, d2=0, pf=2, nocomm=0, noexp=0, g1=0, g2=0, dw=0, two1=0, two2=0, sync=False, forceg=0):
    lg = Cnt(a, "lgkmcnt", 15); vm = Cnt(a, "vmcnt", 63)
    tsn = [0]
    def ts():
        if tstamp == 1 or (tstamp in (2, 4) and tsn[0] in (0, 6, 8)):
            a(f"s_memtime s[{sTS+2*tsn[0]}:{sTS+2*tsn[0]+1}]")
        tsn[0] += 1
    def tc(i):
        if tstamp == 2: a(f"s_memtime s[{sTS+2*i}:{sTS+2*i+1}]")
    a(f"s_load_dwordx4 s[76:79], s[0:1], {A_MEM0}")
    a(f"s_load_dwordx4 s[80:83], s[0:1], {A_WK}")
    a(f"s_load_dwordx2 s[84:85], s[0:1], {A_WO}")
    a(f"s_load_dwordx4 s[88:91], s[0:1], {DBG}")
    a("v_lshrrev_b32 v12, 6, v0")
    a("v_and_b32 v13, 63, v0")
    a(f"v_readfirstlane_b32 s{sW}, v12")
    a("v_and_b32 v14, 15, v13")
    a("v_lshrrev_b32 v15, 4, v13")
    a("s_waitcnt lgkmcnt(0)")
    srd(a, sM0, 76, 9216); srd(a, sWQ, 78, 4718592); srd(a, sWK, 80, 4718592); srd(a, sWV, 82, 4718592)
    srd(a, sWO, 84, 4718592); srd(a, sDB, 88, 256); srd(a, sWS, 90, WS_SIZE)
    L, C, G = 13, 14, 15
    a(f"v_lshlrev_b32 v{vMS}, 4, v0")
    for k, r in ((1, vM1), (2, vM2), (3, vM3)): a(f"v_xor_b32 v{r}, {k<<10:#x}, v{vMS}")
    a(f"v_and_b32 v16, 2, v{L}"); a(f"v_cmp_ne_u32 s[{mP}:{mP+1}], 0, v16")
    a(f"v_cmp_gt_u32 s[{mN6}:{mN6+1}], 6, v{C}")
    a(f"v_cmp_gt_u32 s[{mL18}:{mL18+1}], 18, v{L}")
    a(f"v_lshrrev_b32 v16, 1, v{C}")
    for k, m in enumerate((mS0, mS1, mS2)): a(f"v_cmp_eq_u32 s[{m}:{m+1}], {k}, v16")
    a(f"v_and_b32 v16, 1, v{L}"); a(f"v_cmp_ne_u32 s[{mODD}:{mODD+1}], 0, v16")
    def pv(p):
        x = 0xE if p else 0x4; val = 0x5 if p else 0x4
        return x | val << 4 | x << 8 | val << 12
    a(f"v_cmp_gt_u32 s[{mLO}:{mLO+1}], 32, v{L}")
    a(f"v_mov_b32 v16, {(pv(0) << 16) | 0x4444:#x}"); a(f"v_mov_b32 v18, {(pv(1) << 16) | 0xEEEE:#x}")
    a(f"v_cndmask_b32 v{vIDX}, v16, v18, s[{mP}:{mP+1}]")
    R, CC = 16, 17
    a(f"v_lshrrev_b32 v{R}, 2, v{C}"); a(f"v_and_b32 v{CC}, 3, v{C}")
    a(f"v_lshrrev_b32 v18, 1, v{G}")
    a(f"v_and_b32 v19, 1, v{G}")
    a(f"v_lshrrev_b32 v20, 1, v{R}")
    a(f"v_and_b32 v21, 1, v{R}")
    a("v_lshl_or_b32 v22, v18, 4, v21")
    a("v_lshl_or_b32 v22, v19, 2, v22")
    a("v_lshl_or_b32 v22, v20, 3, v22")
    a("v_lshl_or_b32 v23, v19, 1, v21")
    a("v_lshl_or_b32 v23, v20, 2, v23")
    a(f"s_lshl_b32 s{sT0}, s{sW}, 1")
    a(f"v_xor_b32 v23, s{sT0}, v23")
    a("v_lshlrev_b32 v22, 8, v22")
    a("v_lshl_or_b32 v22, v23, 5, v22")
    a(f"v_lshl_or_b32 v22, v{CC}, 3, v22")
    a(f"v_add_u32 v{vWA0}, 0x4000, v22")
    a(f"v_xor_b32 v{vWA1}, 32, v{vWA0}")
    a(f"v_lshlrev_b32 v22, 3, v{C}")
    a("v_lshl_or_b32 v22, v19, 7, v22")
    a(f"v_lshl_or_b32 v{vXR}, v18, 10, v22")
    a("v_lshl_or_b32 v22, v18, 9, v22")
    a(f"s_lshl_b32 s{sT0}, s{sW}, 10")
    a(f"v_or_b32 v{vXO}, s{sT0}, v22")
    a(f"v_lshlrev_b32 v22, 5, v{CC}")
    a("v_lshl_or_b32 v22, v21, 8, v22")
    a("v_lshl_or_b32 v22, v20, 7, v22")
    a(f"v_or_b32 v22, s{sT0}, v22")
    a(f"v_lshl_or_b32 v{vXq}, v{G}, 3, v22")
    a("v_lshl_or_b32 v22, v18, 3, v22")
    a(f"v_lshl_or_b32 v{vXk}, v19, 4, v22")
    a(f"s_lshl_b32 s{sT0}, s{sW}, 15"); a(f"s_lshl_b32 s{sT1}, s{sH}, 7")
    a(f"s_add_u32 s{sPSo}, s{sT0}, s{sT1}"); a(f"s_add_u32 s{sPSo}, s{sPSo}, {PART:#x}")
    a(f"s_lshl_b32 s{sT0}, s{sW}, 5"); a(f"s_add_u32 s{sT0}, s{sT0}, s{sH}"); a(f"s_lshl_b32 s{sT0}, s{sT0}, 12")
    a(f"s_lshl_b32 s{sT1}, s{sW}, 10"); a(f"s_sub_u32 s{sT0}, s{sT0}, s{sT1}")
    a(f"s_add_u32 s{sPLo}, s{sT0}, {PART:#x}")
    a(f"s_mul_i32 s{sT0}, s{sW}, 3072"); a(f"s_lshl_b32 s{sT2}, s{sH}, 5"); a(f"s_add_u32 s{sT0}, s{sT0}, s{sT2}")
    a(f"s_add_u32 s{sMOb}, s{sT0}, {MEMS:#x}")
    a(f"s_mov_b32 s{sMIb}, {MEMS + 8192:#x}")
    a(f"s_mul_i32 s{sT0}, s{sH}, 288"); a(f"s_add_u32 s{sARb}, s{sT0}, {MEMS - 3072:#x}")
    a(f"s_add_u32 s{sARM}, s{sARb}, {SLOT}")
    a(f"s_lshl_b32 s{sT0}, s{sH}, 14"); a(f"s_add_u32 s{sKV0}, s{sT0}, {KVX:#x}")
    a(f"s_add_u32 s{sKV1}, s{sKV0}, 4096"); a(f"s_add_u32 s{sKV2}, s{sKV0}, 8192"); a(f"s_add_u32 s{sKV3}, s{sKV0}, 12288")
    pass
    a(f"s_lshl_b32 s{sT0}, s{sH}, 12"); a(f"s_add_u32 s{sKVM}, s{sT0}, {KVM:#x}")
    import struct, math
    cbits = struct.unpack("<I", struct.pack("<f", (128 ** -0.5) * math.log2(math.e)))[0]
    a(f"s_mov_b32 s{sC}, {cbits:#x}"); a(f"s_mov_b32 s{sC+1}, {cbits:#x}")
    a(f"s_mov_b32 s{sSPIN}, 0")
    a("v_mov_b64 v[24:25], 0"); a("v_mov_b64 v[26:27], 0")
    a(f"s_cmp_eq_u32 s{sW}, 3"); a("s_cbranch_scc1 R_init3")
    for j in range(4): a(f"buffer_store_dwordx4 v[24:27], v{vMS}, s[{sWS}:{sWS+3}], s{sPLo} offen offset:{1024*j} sc1")
    a("s_branch R_init_done")
    a.lab("R_init3")
    a("v_mov_b64 v[24:25], -1"); a("v_mov_b64 v[26:27], -1")
    a(f"s_mov_b64 exec, s[{mL18}:{mL18+1}]")
    a(f"buffer_store_dwordx4 v[24:27], v{vMS}, s[{sWS}:{sWS+3}], s{sARM} offen sc1")
    a(f"s_add_u32 s{sARM}, s{sARM}, {SLOT}")
    a(f"buffer_store_dwordx4 v[24:27], v{vMS}, s[{sWS}:{sWS+3}], s{sARM} offen sc1")
    a("s_mov_b64 exec, -1")
    a.lab("R_init_done")
    a("s_waitcnt vmcnt(0)")
    a("s_barrier")
    a(f"v_cmp_eq_u32 vcc, 0, v{vMS}")
    a(f"s_and_saveexec_b64 s[{sT0}:{sT1}], vcc")
    a("s_cbranch_execz R_init_sig")
    a("v_mov_b32 v24, s7")
    a(f"buffer_atomic_add v24, off, s[{sDB}:{sDB+3}], 0 offset:{D_RDY}")
    a.lab("R_init_sig")
    a("s_mov_b64 exec, -1")
    a(f"s_lshl_b32 s{sT0}, s{sW}, 2")
    a("v_lshlrev_b32 v22, 1, v19")
    a(f"v_or_b32 v22, s{sT0}, v22")
    a(f"v_xor_b32 v22, v22, v{C}")
    a("v_lshrrev_b32 v23, 2, v22")
    a(f"v_add_u32 v24, s{sT0}, v{G}")
    a("v_lshlrev_b32 v24, 13, v24")
    a("v_lshl_or_b32 v32, v22, 4, v24")
    for k in range(4):
        a(f"v_xor_b32 v24, {k}, v23")
        a(f"v_lshl_or_b32 v{28+k}, v24, 19, v32")
    a(f"s_lshr_b32 s{sT0}, s{sW}, 1"); a(f"s_lshl_b32 s{sT0}, s{sT0}, 4")
    a(f"s_and_b32 s{sT1}, s{sW}, 1"); a(f"s_lshl_b32 s{sT1}, s{sT1}, 2"); a(f"s_add_u32 s{sT0}, s{sT0}, s{sT1}")
    a("v_bfe_u32 v24, v22, 1, 1")
    a(f"v_lshl_add_u32 v24, v24, 6, v{G}")
    a(f"v_add_u32 v24, s{sT0}, v24")
    a("v_mul_u32_u24 v24, 1152, v24")
    a("v_lshl_add_u32 v24, v23, 5, v24")
    a("v_and_b32 v25, 1, v22")
    a("v_lshl_add_u32 v33, v25, 4, v24")
    a(f"s_lshl_b32 s{sT2}, s{sH}, 8")
    a(f"s_mul_i32 s{sT3}, s{sH}, 147456")
    a(f"s_lshl_b32 s75, s{sW}, 10")
    def dma(ch, slot):
        m_, p = ch
        for m in range(4):
            a(f"s_add_u32 m0, s75, {CH(slot) + m*4096:#x}")
            if m_ == "o":
                a(f"s_add_u32 s{sT0}, s{sT3}, {(32*(m>>1) + 8*(m&1))*1152 + p*128:#x}")
                a(f"buffer_load_dwordx4 v33, s[{sWO}:{sWO+3}], s{sT0} offen lds")
            else:
                sr = {"q": sWQ, "k": sWK, "v": sWV}[m_]
                if p == 2: vo, fb = 32, 8
                elif p < 2: vo, fb = 28, 4 * p
                else: vo, fb = 28 + (p - 3) % 3 + 1, 4 * ((p - 3) // 3)
                a(f"s_add_u32 s{sT0}, s{sT2}, {fb*524288 + m*16*8192:#x}")
                a(f"buffer_load_dwordx4 v{vo}, s[{sr}:{sr+3}], s{sT0} offen lds")
    def trd(dst_f, dst_b, tau, off, tag=None, a0=vWA0, a1=vWA1):
        for jj in range(4):
            o = off + (32 * (jj >> 1) + 2 * (jj & 1)) * 256
            assert o < 65536
            a(f"ds_read_b64_tr_b16 {dst_f}[{dst_b+2*jj}:{dst_b+2*jj+1}], v{a1 if tau else a0} offset:{o}")
            if tag: lg.issue(tag)
    for gi in range(3):
        a(f"v_add_u32 v{34+2*gi}, {gi*49152:#x}, v{vWA0}"); a(f"v_add_u32 v{35+2*gi}, {gi*49152:#x}, v{vWA1}")
    order = REGCH + RES
    for gi in range(3):
        for j in range(3): dma(order[3*gi + j], 3*gi + j)
    for gi in range(9):
        a("s_waitcnt vmcnt(24)")
        a("s_barrier")
        sg = gi % 3
        for j in range(3):
            ch = order[3*gi + j]
            for tau in range(2):
                f, b = WREG[ch + (tau,)]
                trd(f, b, tau, j * 16384, a0=34 + 2*sg, a1=35 + 2*sg)
        a("s_waitcnt lgkmcnt(0)")
        a("s_barrier")
        for j in range(3): dma(order[3*(gi+3) + j], 3*sg + j)
    a("s_waitcnt vmcnt(0)")
    a("s_barrier")
    a(f"v_add_u32 v41, 0x10000, v{vMS}"); a(f"v_add_u32 v42, 0x20000, v{vMS}")
    for j in range(9):
        sg = j // 3
        for tau in range(2): trd("v", 44 + 8 * tau, tau, (j % 3) * 16384, a0=34 + 2*sg, a1=35 + 2*sg)
        a("s_waitcnt lgkmcnt(0)")
        a("s_barrier")
        for q_ in range(4):
            off = CH(j) + q_ * 4096
            a(f"ds_write_b128 v{(vMS, 41, 42)[off >> 16]}, {vr(44 + 4*q_, 4)} offset:{off & 0xffff}")
    a(f"v_mov_b32 v{vWA0}, v41"); a(f"v_mov_b32 v{vWA1}, v42")
    a("s_waitcnt lgkmcnt(0)")
    a(f"v_and_b32 v22, 1, v{C}")
    a(f"v_lshl_or_b32 v22, v{R}, 1, v22")
    a("v_mul_u32_u24 v22, 1152, v22")
    a(f"v_lshl_add_u32 v22, v{G}, 5, v22")
    a(f"v_and_b32 v23, 2, v{C}")
    a("v_lshl_add_u32 v40, v23, 3, v22")
    a(f"v_bfe_u32 v22, v{L}, 2, 1")
    a(f"v_lshl_or_b32 v22, v{G}, 1, v22")
    a("v_mul_u32_u24 v22, 1152, v22")
    a(f"v_bfe_u32 v23, v{L}, 3, 1")
    a("v_lshl_add_u32 v22, v23, 4, v22")
    a(f"v_lshl_add_u32 v43, v{CC}, 2, v22")
    a(f"s_lshl_b32 s{sT0}, s{sW}, 7"); a(f"s_lshl_b32 s{sT1}, s{sW}, 5")
    a(f"buffer_load_dwordx4 {vr(F[0],4)}, v40, s[{sM0}:{sM0+3}], s{sT0} offen")
    a(f"buffer_load_dwordx4 {vr(F[1],4)}, v40, s[{sM0}:{sM0+3}], s{sT0} offen offset:512")
    a(f"buffer_load_dword v{E+1}, v43, s[{sM0}:{sM0+3}], s{sT1} offen offset:1024")
    a.lab("R_ready")
    a(f"buffer_load_dword v42, off, s[{sDB}:{sDB+3}], 0 offset:{D_RDY} sc1")
    a(f"s_add_u32 s{sSPIN}, s{sSPIN}, 1")
    a(f"s_cmp_gt_u32 s{sSPIN}, 0x100000"); a("s_cbranch_scc1 L_exit")
    a("s_waitcnt vmcnt(0)")
    a("v_readfirstlane_b32 s7, v42")
    a(f"s_and_b32 s{sT0}, s7, 0xffff")
    a(f"s_cmp_lt_u32 s{sT0}, 32"); a("s_cbranch_scc1 R_ready")
    def kv_wait(lab, target):
        a.lab(lab)
        a(f"buffer_load_dword v{vJ}, off, s[{sWS}:{sWS+3}], s{sFL} sc1")
        a(f"s_add_u32 s{sSPIN}, s{sSPIN}, 1")
        a(f"s_cmp_gt_u32 s{sSPIN}, 0x400000"); a("s_cbranch_scc1 L_exit")
        a("s_waitcnt vmcnt(0)")
        kv_decode()
        a(f"s_cmp_lt_u32 s{sKVP}, {target}"); a(f"s_cbranch_scc1 {lab}")
    def kv_decode():
        a(f"v_readfirstlane_b32 s{sKVP}, v{vJ}")
        a(f"s_lshr_b32 s{sT1}, s{sKVP}, 16"); a(f"s_and_b32 s{sKVP}, s{sKVP}, 0xffff"); a(f"s_min_u32 s{sKVP}, s{sKVP}, s{sT1}")
    if sync:
        a.lab("R_init")
        a(f"buffer_load_dword v42, off, s[{sDB}:{sDB+3}], 0 offset:{D_INIT} sc1")
        a(f"s_add_u32 s{sSPIN}, s{sSPIN}, 1")
        a(f"s_cmp_gt_u32 s{sSPIN}, 0x100000"); a("s_cbranch_scc1 L_exit")
        a("s_waitcnt vmcnt(0)")
        a(f"v_readfirstlane_b32 s{sT0}, v42")
        a(f"s_cmp_lt_u32 s{sT0}, 1"); a("s_cbranch_scc1 R_init")
        a(f"s_lshl_b32 s{sFL}, s{sH}, 7"); a(f"s_add_u32 s{sFL}, s{sFL}, {FLG:#x}")
        a(f"s_add_u32 s{sFR}, s{sFL}, 4096")
        kv_wait("R_kv0", 2)
    a("s_barrier")
    a("v_mov_b64 v[40:41], 0"); a("v_mov_b64 v[42:43], 0")
    a(f"ds_write_b128 v{vMS}, v[40:43] offset:8192")
    a(f"s_mov_b32 s{sONE}, 0x3f803f80"); a(f"s_mov_b32 s{sONE+1}, 0x3f803f80")
    def WL(dst, ch, tau, tag=None):
        j = RES.index(ch); out = []
        for hf in range(2):
            off = CH(j) + tau * 8192 + hf * 4096
            out.append(I(f"ds_read_b128 {vr(dst+4*hf,4)}, v{(vMS, vWA0, vWA1)[off >> 16]} offset:{off & 0xffff}", lg if tag else None, tag))
        return out
    def I(text, cnt=None, tag=None):
        def f():
            a(text)
            if cnt is not None: cnt.issue(tag)
        return f
    def run(*items):
        for it in items:
            if isinstance(it, (list, tuple)): run(*it)
            else: it()
    def preload(): run(WL(ST, ("q", 0), 0), WL(ST + 8, ("q", 0), 1))
    def preload2(): run(WL(F[2], ("k", 0), 0), WL(F[4], ("k", 0), 1))
    preload(); preload2()
    for r in range(AQ0, AQ0 + 16, 2): a(f"v_mov_b64 {vr(r,2)}, 0")
    a(f"s_mov_b32 s{sS}, 0"); a(f"s_mov_b32 s{sTAG}, 1")
    a(f"v_mov_b32 v{vJ}, 0")
    for r in list(range(F[0], F[0] + 8)) + [E + 1]: a(f"v_min_u32 v{r}, -2, v{r}")
    a(f"v_and_b32 v{E}, 0x3ff, v{vMS}"); a(f"v_lshrrev_b32 v{E+2}, 2, v{vMS}")
    a("s_waitcnt lgkmcnt(0)")

    WSR = f"s[{sWS}:{sWS+3}]"
    def smf(acc, A, B, pvidx=False):
        a(f"v_smfmac_f32_16x16x64_bf16 {vr(acc,4)}, {vr(A,4)}, {B}, v{vIDX}" + (" abid:1" if pvidx else ""))
    FR = {0: F[0], 1: F[1], 2: E, 3: F[2], 4: F[3], 5: F[4], 6: F[5], 7: F[0], 8: F[1]}
    S0, S1 = vr(ST, 8), vr(ST + 8, 8)
    ACC = {"q": (AQ0, AQ1), "k": (AK0, AK1), "v": (AQ0, AQ1)}
    def M(m, pos, tau, B=None):
        if B is None: B = wr((m, pos), tau)
        return lambda: smf(ACC[m][tau], FR[pos], B)
    def LW(tag): return lambda: lg.wait(tag)
    def VW(tag): return lambda: vm.wait(tag)
    def add2(r): return [I(f"v_add_f32 v{r}, v{r}, v{r+2}"), I(f"v_add_f32 v{r+1}, v{r+1}, v{r+3}")]
    def pkadd(r): a(f"v_pk_add_f32 {vr(r,2)}, {vr(r,2)}, {vr(r+2,2)}")
    def PK(r): return lambda: pkadd(r)
    def cvt(d, x, y): return I(f"v_cvt_pk_bf16_f32 v{d}, v{x}, " + (f"v{y}" if y is not None else "0"))
    def z2(r): return I(f"v_mov_b64 {vr(r,2)}, 0")
    def rdf(pos):
        k = (pos - 3) % 3; off = 4096 * ((pos - 3) // 3)
        return I(f"ds_read_b128 {vr(FR[pos],4)}, v{(vM1,vM2,vM3)[k]} offset:{off}", lg, f"f{pos}")
    def sel(d, x, y): return I(f"v_cndmask_b32_dpp v{d}, v{x}, v{y}, vcc quad_perm:[2,3,2,3] row_mask:0xf bank_mask:0xf")
    BAR = I("s_barrier")
    TS_ = lambda: ts()

    if tstamp == 3:
        a("s_memtime s[76:77]"); a("s_memrealtime s[80:81]"); a("s_waitcnt lgkmcnt(0)")
    a(f"s_cmp_gt_u32 s7, {0xffff if not forceg else 0}"); a("s_cbranch_scc1 G_step")
    loop0 = len(a.L)
    a(".p2align 6")
    a.lab("R_step")
    ts()
    a0, a1 = WL(ST, ("q", 3), 0, "a0"), WL(ST + 8, ("q", 3), 1, "a1")
    b0, b1 = WL(ST, ("q", 7), 0, "b0"), WL(ST + 8, ("q", 7), 1, "b1")
    c0, c1 = WL(ST, ("k", 2), 0, "c0"), WL(ST + 8, ("k", 3), 0, "c1")
    d0, d1_ = WL(ST, ("k", 8), 0, "d0"), WL(ST + 8, ("k", 2), 1, "d1")
    e0, e1 = WL(ST, ("k", 3), 1, "e0"), WL(ST + 8, ("k", 8), 1, "e1")
    aq0, aq1, ak0, ak1 = add2(AQ0), add2(AQ1), add2(AK0), add2(AK1)
    sl = [sel(KX1 + r, AQ1 + r, KX0 + r) for r in range(4)]
    NX = 32 * 16384
    def PF(sreg):
        if not pf: return []
        return [I(f"s_add_u32 s{sT0}, s{sreg}, {NX:#x}"), I(f"buffer_load_dword v{vJ}, v{vMS}, {WSR}, s{sT0} offen", vm, "pf")]
    def sig(val):
        a(f"v_mov_b32 v{vJ}, {val}")
        a("s_mov_b64 exec, 1")
        a(f"buffer_store_dword v{vJ}, off, {WSR}, s{sFR} sc1")
        a("s_mov_b64 exec, -1")
    def SIG():
        if not sync: return
        sig(f"s{sS}"); vm.issue("pf")
    def KVF():
        if not sync: return
        a(f"buffer_load_dword v{vJ}, off, {WSR}, s{sFL} sc1"); vm.issue("pf")
    B1 = F[2]
    vm.q = ["l0", "l1", "l2"] + (["y", "y", "y"] if two2 else [])
    CK = E + 3
    run(VW("l0"), lambda: tc(7),
        I(f"v_max3_u32 v{CK}, v{F[0]}, v{F[0]+1}, v{F[0]+2}"), I(f"v_max_u32 v{CK}, v{CK}, v{F[0]+3}"),
        M("q", 0, 0, S0), I(f"ds_write_b128 v{vMS}, {vr(F[0],4)}", lg, "w"),
        M("q", 0, 1, S1), VW("l1"), I(f"v_max3_u32 v{CK}, v{CK}, v{F[1]}, v{F[1]+1}"), I(f"v_max3_u32 v{CK}, v{CK}, v{F[1]+2}, v{F[1]+3}"),
        M("k", 0, 0, vr(F[2], 8)), I(f"ds_write_b128 v{vMS}, {vr(F[1],4)} offset:4096", lg, "w"),
        M("k", 0, 1, vr(F[4], 8)), VW("l2"), I(f"v_max_u32 v{CK}, v{CK}, v{E+1}"),
        M("q", 1, 0), I(f"ds_write_b32 v{E+2}, v{E+1} offset:12288", lg, "w"), I(f"v_cmp_eq_u32 vcc, -1, v{CK}"),
        M("q", 1, 1), I("s_cbranch_vccnz R_fix"), a0[0],
        M("k", 1, 0), a0[1],
        M("k", 1, 1), a1[0], a1[1],
        VW("y") if two2 else [],
        LW("w"), BAR,
        rdf(3), rdf(4), I(f"ds_read_b128 {vr(E,4)}, v{E} offset:12288", lg, "f2"), rdf(5),
        I(f"buffer_load_dwordx4 {vr(KX0,4)}, v{vMS}, {WSR}, s{sKV0} offen{sc_out}", vm, "kx"),
        I(f"buffer_load_dwordx4 {vr(KX1,4)}, v{vMS}, {WSR}, s{sKV1} offen{sc_out}", vm, "kx"),
        I(f"s_mov_b64 vcc, s[{mP}:{mP+1}]"),
        LW("f3"),
        M("q", 3, 0, S0), rdf(6),
        M("q", 3, 1, S1), rdf(8), LW("f4"),
        M("q", 4, 0), rdf(7),
        M("q", 4, 1), b0[0], LW("f2"),
        M("q", 2, 0), b0[1],
        M("q", 2, 1), b1[0], LW("f5"),
        M("q", 5, 0), b1[1],
        M("q", 5, 1), BAR, LW("f8"),
        M("q", 6, 0), SIG,
        M("q", 8, 0), LW("b0"),
        M("q", 7, 0, S0), c0[0],
        M("q", 6, 1), c0[1], LW("b1"),
        M("q", 7, 1, S1), c1[0],
        M("q", 8, 1), c1[1], TS_, aq0[0],
        M("k", 4, 0), PF(sKV0) if pf in (1, 2) else [], aq0[1],
        M("k", 5, 0), LW("c0"), cvt(AQ0 + 2, AQ0, AQ0 + 1),
        M("k", 2, 0, S0), d0[0], aq1[0],
        M("k", 6, 0), d0[1], aq1[1], LW("c1"),
        M("k", 3, 0, S1), I(f"ds_write_b32 v{vXq}, v{AQ0+2} offset:{8192+4}", lg, "w"), cvt(AQ0 + 3, AQ1, AQ1 + 1),
        M("k", 7, 0), I(f"ds_write_b32 v{vXq}, v{AQ0+3} offset:{8192+4+512}", lg, "w"),
        M("k", 4, 1), I(f"ds_read_b64_tr_b16 {vr(AQ0,2)}, v{vXO} offset:8192", lg, "xo"),
            I(f"ds_read_b64_tr_b16 {vr(AQ0+2,2)}, v{vXO} offset:{8192+256}", lg, "xo"), LW("d0"),
        M("k", 8, 0, S0), d1_[0],
        M("k", 5, 1), d1_[1],
        M("k", 6, 1), e0[0], VW("kx"),
        M("k", 7, 1), e0[1], LW("xo"),
        I(f"v_mfma_f32_16x16x32_bf16 {vr(AQ1,4)}, {vr(KX0,4)}, {vr(AQ0,4)}, 0"), ak0[0], ak0[1],
        I(f"v_mfma_f32_16x16x32_bf16 {vr(KX0,4)}, {vr(KX1,4)}, {vr(AQ0,4)}, 0"), LW("d1"), cvt(AK0 + 3, AK0, AK0 + 1), z2(AQ0),
        M("k", 2, 1, S1), e1[0], z2(AQ0 + 2),
        e1[1], LW("e0"),
        M("k", 3, 1, S0), I(f"ds_write_b32 v{vXk}, v{AK0+3} offset:8192", lg, "w"), sl[0],
        M("v", 3, 0), I(f"buffer_load_dwordx2 {vr(AK0,2)}, v{vMS}, {WSR}, s{sKV2} offen{sc_out}", vm, "vx"), sl[1], LW("e1"),
        M("k", 8, 1, S1), TS_, sl[2], sl[3],
        M("v", 4, 0), I(f"ds_write_b128 v{vMS}, {vr(KX1,4)} offset:12288", lg, "w"),
        z2(AQ1), z2(AQ1 + 2),
        ak1, cvt(AK1 + 3, AK1, AK1 + 1),
        M("v", 3, 1), I(f"ds_write_b32 v{vXk}, v{AK1+3} offset:{8192+512}", lg, "w"),
        M("v", 4, 1), I(f"buffer_load_dwordx2 {vr(AK1,2)}, v{vMS}, {WSR}, s{sKV2} offen offset:8{sc_out}", vm, "vx"),
        M("v", 5, 0), I(f"buffer_load_dwordx2 {vr(B1,2)}, v{vMS}, {WSR}, s{sKV3} offen{sc_out}", vm, "vx"),
        M("v", 5, 1), I(f"buffer_load_dwordx2 {vr(B1+4,2)}, v{vMS}, {WSR}, s{sKV3} offen offset:8{sc_out}", vm, "vx"),
        LW("w"), BAR)
    xr = [I(f"ds_read_b64_tr_b16 {vr(ST+4*ks+2*x,2)}, v{vXR} offset:{8192 + (ks&1)*2048 + (ks>>1)*512 + x*256}", lg, f"x{ks}")
          for ks in range(4) for x in range(2)]
    SMD = F[0]
    def SM(ks): return I(f"v_mfma_f32_16x16x32_bf16 {vr(SMD,4)}, {vr(ST+4*ks,4)}, {vr(ST+4*ks,4)}, {vr(SMD,4) if ks else 0}")
    def addq(d, x): return [I(f"v_add_f32 v{d+r}, v{d+r}, v{x+r}") for r in range(4)]
    m_, sm_, t_ = SMD + 3, SMD + 2, SMD
    p1, p2, p3 = addq(KX1, KX0), addq(KX1, F[4]), addq(KX1, F[5])
    wA = WL(ST, ("o", 1), 0, "woA") + WL(ST + 8, ("o", 1), 1, "woA")
    def MV(pos, tau, A): return lambda: smf(ACC["v"][tau], A, wr(("v", pos), tau))
    OA0, OA1 = F[4], F[5]
    run(xr[0], xr[1],
        M("v", 6, 0), I(f"ds_read_b128 {vr(KX0,4)}, v{vM1} offset:12288", lg, "p1"), xr[2],
        M("v", 6, 1), xr[3], I(f"ds_read_b128 {vr(F[4],4)}, v{vM2} offset:12288", lg, "p2"),
        M("v", 7, 0), xr[4], xr[5],
        M("v", 7, 1), I(f"ds_read_b128 {vr(F[5],4)}, v{vM3} offset:12288", lg, "p3"), LW("x1"),
        SM(0), xr[6], xr[7],
        SM(1), PF(sKV2), p1[0], p1[1], LW("x2"),
        SM(2), PF(sKV3), p1[2], p1[3],
        M("v", 8, 0), I(f"ds_read_b128 {vr(KX0,4)}, v{vMS}", lg, "o0"), LW("x3"),
        SM(3), TS_, p2[0], p2[1],
        M("v", 8, 1), I(f"ds_read_b128 {vr(F[1],4)}, v{vMS} offset:4096", lg, "o1"), p2[2], p2[3],
        p3,
        sel(sm_, SMD, SMD + 1),
        I(f"v_max3_f32 v{m_}, v{KX1}, v{KX1+1}, v{KX1+2}"),
        I(f"v_max3_f32 v{m_}, v{m_}, v{KX1+3}, v{sm_}"),
        M("v", 2, 0), PF(sKV1) if pf >= 2 else [],
        I(f"v_max_f32_dpp v{m_}, v{m_}, v{m_} quad_perm:[2,3,0,1] row_mask:0xf bank_mask:0xf"),
        I(f"v_mov_b32 v{t_}, v{m_}"),
        M("v", 2, 1), wA[1],
        I(f"v_permlane16_swap_b32 v{t_}, v{m_}"),
        I(f"v_max_f32 v{m_}, v{t_}, v{m_}"),
        I(f"v_mov_b32 v{t_}, v{m_}"), LW("o1"),
        MV(0, 0, KX0), wA[2],
        I(f"v_permlane32_swap_b32 v{t_}, v{m_}"),
        I(f"v_max_f32 v{m_}, v{t_}, v{m_}"),
        MV(1, 0, F[1]), wA[3],
        I(f"v_mul_f32 v{t_}, s{sC}, v{m_}"),
        MV(0, 1, KX0), wA[0],
        I(f"v_fma_f32 v{sm_}, v{sm_}, s{sC}, -v{t_}"),
        MV(1, 1, F[1]), KVF,
        [I(f"v_fma_f32 v{KX1+r}, v{KX1+r}, s{sC}, -v{t_}") for r in range(4)],
        I(f"v_exp_f32 v{sm_}, v{sm_}"),
        [I(f"v_exp_f32 v{KX1+r}, v{KX1+r}") for r in range(4)],
        cvt(sm_, sm_, None),
        cvt(E, KX1, KX1 + 1), cvt(E + 2, KX1 + 2, KX1 + 3),
        I(f"v_cndmask_b32 v{E+1}, 0, v{sm_}, s[{mLO}:{mLO+1}]"),
        I(f"v_cndmask_b32 v{E+3}, v{sm_}, 0, s[{mLO}:{mLO+1}]"),
        PK(AQ0), PK(AQ1),
        z2(OA0), z2(OA0 + 2),
        cvt(AK0 + 2, AQ0, AQ0 + 1), cvt(AK1 + 2, AQ0, AQ0 + 1),
        z2(OA1), VW("vx"), z2(OA1 + 2),
        lambda: smf(OA0, E, vr(AK0, 8), True),
        I(f"s_cmp_eq_u32 s{sS}, {nsteps-1}"),
        cvt(B1 + 2, AQ1, AQ1 + 1), cvt(B1 + 6, AQ1, AQ1 + 1),
        I(f"v_mov_b64 {vr(KX0,2)}, s[{sONE}:{sONE+1}]"), I(f"v_mov_b64 {vr(KX0+2,2)}, s[{sONE}:{sONE+1}]"),
        lambda: smf(OA1, E, vr(B1, 8), True),
        I("s_cbranch_scc1 R_done"),
        I(f"v_mfma_f32_16x16x32_bf16 {vr(KX1,4)}, {vr(E,4)}, {vr(KX0,4)}, 0"),
        TS_)
    VST = [I(f"v_mov_b32 v{AK0}, v{AK1+3}"), I(f"v_mov_b32 v{AK0+1}, v{B1+2}"),
           I(f"buffer_store_dwordx4 {vr(AK0,4)}, v{vMS}, {WSR}, s{sKVM} offen{sc_out}", vm, "st")]
    if noexp: VST = []
    wC = WL(ST, ("o", 8), 0, "woC") + WL(ST + 8, ("o", 8), 1, "woC")
    accs = [F[0], F[1], AQ0, AQ1, KX0, F[4], F[5], AK0, AK1]
    run(add2(OA0), z2(F[0]), z2(F[0] + 2), add2(OA1),
        add2(KX1),
        I(f"v_rcp_f32 v{KX1}, v{KX1}"), I(f"v_rcp_f32 v{KX1+1}, v{KX1+1}"),
        z2(F[1]),
        I(f"v_pk_mul_f32 {vr(OA0,2)}, {vr(OA0,2)}, {vr(KX1,2)}"),
        I(f"v_pk_mul_f32 {vr(OA1,2)}, {vr(OA1,2)}, {vr(KX1,2)}"),
        cvt(KX1 + 2, OA0, OA0 + 1),
        cvt(KX1 + 3, OA1, OA1 + 1),
        I(f"ds_write_b64 v{vXq}, {vr(KX1+2,2)}", lg, "w"),
        VST, z2(F[1] + 2), z2(AQ0), z2(AQ0 + 2), z2(AQ1), z2(AQ1 + 2),
        LW("w"), BAR,
        [I(f"ds_read_b64_tr_b16 {vr(F[2]+4*ks+2*x,2)}, v{vXR} offset:{ks*2048 + x*256}", lg, f"a{ks}") for ks in range(2) for x in range(2)],
        z2(KX0), z2(KX0 + 2), z2(F[4]), z2(F[4] + 2), z2(F[5]), z2(F[5] + 2), z2(AK1))
    ts()
    A0, A1 = F[2], F[3]
    def WB(t, ks):
        if t in (1, 8): return (S0, S1)[ks]
        return wr(("o", t), ks)
    def O(t, ks): return lambda: smf(accs[t], (A0, A1)[ks], WB(t, ks))
    def fin(t):
        r = accs[t]; return add2(r) + [cvt(E + t % 3, r, r + 1)]
    def pst(T):
        return I(f"buffer_store_dwordx4 {vr(E,4)}, v{KX1+2}, {WSR}, s{(sPSo, sT0, sT1)[T]} offen ; HO", vm, "ps")
    f = [fin(t) for t in range(9)]
    run(LW("a0"), O(0, 0), I(f"s_add_u32 s{sT0}, s{sPSo}, {32*4096:#x}"), z2(AK1 + 2),
        O(1, 0), wC[0], z2(AK0), LW("a1"),
        O(0, 1), wC[1], z2(AK0 + 2),
        O(1, 1), wC[2], I(f"v_and_b32 v{KX1+2}, 0x70, v{vMS}"),
        O(2, 0), wC[3], I(f"v_and_b32 v{KX1+3}, 0x380, v{vMS}"),
        O(2, 1), I(f"s_add_u32 s{sT1}, s{sPSo}, {64*4096:#x}"), I(f"v_lshl_or_b32 v{KX1+2}, v{KX1+3}, 5, v{KX1+2}"), f[0][0],
        O(3, 0), f[0][1], I(f"v_mov_b32 v{E+3}, s{sTAG}"),
        O(3, 1), f[0][2], f[1][0],
        O(4, 0), f[1][1], f[2][0],
        O(4, 1), f[1][2], f[2][1],
        O(5, 0), f[2][2], f[3][0],
        O(5, 1), pst(0), f[3][1],
        O(6, 0), f[4][0], f[3][2],
        O(6, 1), f[4][1], f[4][2],
        O(7, 0), f[5][0], f[5][1],
        O(7, 1), LW("woC"), f[5][2], f[6][0],
        O(8, 0), pst(1), f[6][1],
        O(8, 1), f[7][0], f[7][1], f[6][2], f[7][2],
        PK(accs[8]), f[8][2], pst(2))
    ts()
    preload()
    a(f"s_and_b32 s{sT0}, s{sTAG}, 3"); a(f"s_lshl_b32 s{sT0}, s{sT0}, 14")
    a(f"s_add_u32 s{sMOo}, s{sMOb}, s{sT0}"); a(f"s_add_u32 s{sMI2}, s{sMIb}, s{sT0}")
    a(f"s_add_u32 s{sMI0}, s{sT0}, {MEMS:#x}"); a(f"s_add_u32 s{sMI1}, s{sT0}, {MEMS + 4096:#x}")
    a(f"s_xor_b32 s{sT0}, s{sT0}, 0x8000"); a(f"s_add_u32 s{sARM}, s{sARb}, s{sT0}")
    if tstamp in (1, 2, 4):
        a(f"s_memrealtime s[{sTS+18}:{sTS+19}]")
        a(f"s_lshl_b32 s{sT0}, s{sH}, 2"); a(f"s_add_u32 s{sT0}, s{sT0}, s{sW}"); a(f"s_lshl_b32 s{sT0}, s{sT0}, 6")
        a(f"s_add_u32 s{sT0}, s{sT0}, s{sS}"); a(f"s_lshl_b32 s{sT0}, s{sT0}, 6"); a(f"s_add_u32 s{sT0}, s{sT0}, {TS:#x}")
        a(f"v_bfe_u32 v{F[1]+1}, v{vMS}, 2, 8")
        a("s_waitcnt lgkmcnt(0)")
        for i in range(9): a(f"v_writelane_b32 v{F[1]}, s{sTS+2*i}, {i}")
        a(f"v_writelane_b32 v{F[1]}, s{sTS+18}, 14")
        a(f"v_writelane_b32 v{F[1]}, s{sSPIN}, 15")
        a("s_mov_b64 exec, 0xffff")
        a(f"buffer_store_dword v{F[1]}, v{F[1]+1}, {WSR}, s{sT0} offen")
        a("s_mov_b64 exec, -1")
    if nocomm:
        preload2(); a("s_branch R_h2")
    a(f"s_cmp_eq_u32 s{sW}, 3"); a("s_cbranch_scc1 R_w3")
    a(f"v_mov_b32 v{KX1}, 0x3f80"); a(f"v_mov_b32 v{KX1+1}, 0x3f800000")
    a(f"v_cndmask_b32 v{KX1}, v{KX1}, v{KX1+1}, s[{mODD}:{mODD+1}]")
    for k, m in enumerate((mS0, mS1, mS2)): a(f"v_cndmask_b32 v{KX0+k}, 0, v{KX1}, s[{m}:{m+1}]")
    a(f"v_mov_b32 v{KX0+3}, 0")
    a(f"v_and_b32 v{F[0]}, 0x10, v{vMS}")
    a(f"v_and_b32 v{F[0]+1}, 0xe0, v{vMS}")
    a(f"v_lshl_or_b32 v{F[0]}, v{F[0]+1}, 5, v{F[0]}")
    a(f"v_bfe_u32 v{F[0]+1}, v{vMS}, 8, 1")
    a(f"v_lshl_or_b32 v{F[0]}, v{F[0]+1}, 3, v{F[0]}")
    a(f"v_bfe_u32 v{F[0]+1}, v{vMS}, 9, 1")
    a(f"v_lshl_or_b32 v{F[0]}, v{F[0]+1}, 2, v{F[0]}")
    def gap(n):
        for _ in range(n):
            a(f"v_mov_b32 v{F[0]+2}, 0"); a("s_nop 2")
    def p1_issue(R_):
        for j in range(4): a(f"buffer_load_dwordx4 {vr(R_+4*j,4)}, v{vMS}, {WSR}, s{sPLo} offen offset:{1024*j} sc1")
    def p1_check(R_, fail, younger):
        for j in range(4):
            a(f"s_waitcnt vmcnt({3-j+younger})")
            if j == 0: tc(2)
            if j == 3: tc(3)
            a(f"v_cmp_ne_u32 vcc, s{sTAG}, v{R_+4*j+3}")
            a(f"v_mfma_f32_16x16x32_bf16 {vr(KX1,4)}, {vr(R_+4*j,4)}, {vr(KX0,4)}, {vr(KX1,4) if j else 0}")
            a(f"s_cbranch_vccnz {fail}")
    def spin():
        a(f"s_add_u32 s{sSPIN}, s{sSPIN}, 1")
        a(f"s_cmp_gt_u32 s{sSPIN}, 0x400000"); a("s_cbranch_scc1 L_exit")
    if not two1: preload2()
    gap(d1)
    if dw:
        a(f"s_cmp_eq_u32 s{sW}, 0"); a("s_cbranch_scc1 R_p1")
        gap(dw)
        a(f"s_cmp_eq_u32 s{sW}, 1"); a("s_cbranch_scc1 R_p1")
        gap(dw)
    a.lab("R_p1")
    tc(1)
    if two1:
        p1_issue(AQ0)
        gap(g1)
        a("s_branch R_p1a")
        a.lab("R_p1b")
        p1_issue(AQ0)
        spin()
        p1_check(F[2], "R_p1a", 4)
        a("s_branch R_p1ok")
        a.lab("R_p1a")
        p1_issue(F[2])
        spin()
        p1_check(AQ0, "R_p1b", 4)
        a.lab("R_p1ok")
        a("s_nop 6")
    else:
        p1_issue(AQ0)
        spin()
        p1_check(AQ0, "R_p1", 0)
    a(f"v_permlane32_swap_b32 v{KX1}, v{KX1+2}")
    a(f"v_permlane32_swap_b32 v{KX1+1}, v{KX1+3}")
    pkadd(KX1)
    a(f"v_cvt_pk_bf16_f32 v{KX1}, v{KX1}, v{KX1+1}")
    a(f"s_mov_b64 exec, s[{mN6}:{mN6+1}]")
    a(f"v_min_u32 v{KX1}, -2, v{KX1}")
    a(f"buffer_store_dword v{KX1}, v{F[0]}, {WSR}, s{sMOo} offen ; HO")
    a("s_mov_b64 exec, -1")
    a("s_branch R_h2")
    a.lab("R_w3")
    if not two1: preload2()
    a(f"v_mov_b64 {vr(KX0,2)}, -1"); a(f"v_mov_b64 {vr(KX0+2,2)}, -1")
    a(f"s_mov_b64 exec, s[{mL18}:{mL18+1}]")
    a(f"buffer_store_dwordx4 {vr(KX0,4)}, v{vMS}, {WSR}, s{sARM} offen ; HO")
    a("s_mov_b64 exec, -1")
    a("s_waitcnt vmcnt(1)")
    a.lab("R_h2")
    ts(); tc(4)
    a("s_barrier")
    for r in (sKV0, sKV1, sKV2, sKV3): a(f"s_add_u32 s{r}, s{r}, {32*16384:#x}")
    a(f"s_add_u32 s{sKVM}, s{sKVM}, {32*4096:#x}")
    a(f"s_add_u32 s{sS}, s{sS}, 1"); a(f"s_add_u32 s{sTAG}, s{sTAG}, 1")
    def gap2(n):
        for _ in range(n):
            a(f"v_mov_b32 v{KX1}, 0"); a("s_nop 2")
    def p2_issue():
        a(f"buffer_load_dwordx4 {vr(F[0],4)}, v{vMS}, {WSR}, s{sMI0} offen sc1")
        a(f"buffer_load_dwordx4 {vr(F[1],4)}, v{vMS}, {WSR}, s{sMI1} offen sc1")
        a(f"buffer_load_dword v{E+1}, v{E+2}, {WSR}, s{sMI2} offen sc1")
    a(f"v_and_b32 v{E}, 0x3ff, v{vMS}"); a(f"v_lshrrev_b32 v{E+2}, 2, v{vMS}")
    if sync:
        kv_decode()
        a(f"s_add_u32 s{sT0}, s{sS}, 2"); a(f"s_min_u32 s{sT0}, s{sT0}, 64")
        a(f"s_cmp_ge_u32 s{sKVP}, s{sT0}"); a("s_cbranch_scc1 R_kvok")
        kv_wait("R_kv1", f"s{sT0}")
        a.lab("R_kvok")
    if two1:
        a("s_waitcnt vmcnt(1)")
        preload2()
    gap2(d2)
    tc(5)
    if nocomm:
        a("s_waitcnt vmcnt(0)")
        for r in list(range(F[0], F[0] + 8)) + [E + 1]: a(f"v_mov_b32 v{r}, 0")
    else: p2_issue()
    for r in range(AQ0, AQ0 + 16, 2): a(f"v_mov_b64 {vr(r,2)}, 0")
    gap2(g2)
    if two2 and not nocomm: p2_issue()
    ts()
    a("s_waitcnt lgkmcnt(0)")
    a("s_branch R_step")
    a.lab("R_fix")
    p2_issue()
    a("s_nop 4")
    for r in range(AK0, AK0 + 8, 2): a(f"v_mov_b64 {vr(r,2)}, 0")
    for r in range(AQ0, AQ0 + 8, 2): a(f"v_mov_b64 {vr(r,2)}, 0")
    spin()
    a("s_waitcnt lgkmcnt(0)")
    a("s_branch R_step")
    a.lab("R_done")
    run(VST)
    if tstamp == 3:
        a("s_memtime s[78:79]"); a("s_memrealtime s[82:83]"); a("s_waitcnt lgkmcnt(0)")
        a("s_sub_u32 s78, s78, s76"); a("s_sub_u32 s82, s82, s80")
        a(f"v_mov_b32 v{F[0]}, s78"); a(f"v_mov_b32 v{F[0]+1}, s82"); a(f"v_mov_b32 v{F[0]+2}, s{sSPIN}"); a(f"v_mov_b32 v{F[0]+3}, 0")
        a(f"s_lshl_b32 s{sT0}, s{sH}, 12"); a(f"s_add_u32 s{sT0}, s{sT0}, {TS:#x}")
        a(f"buffer_store_dwordx4 {vr(F[0],4)}, v{vMS}, {WSR}, s{sT0} offen")
    a("s_waitcnt vmcnt(0)")
    if sync:
        a("s_barrier")
        a(f"s_cmp_lg_u32 s{sW}, 3"); a("s_cbranch_scc1 L_exit")
        sig(64)
        a("s_waitcnt vmcnt(0)")
    a("s_branch L_exit")
    for c in list(a.L[loop0:]):
        a.L.append(Ins(re.sub(r"\bR_", "G_", c.text).replace(" ; HO", " sc1")))

def gen_roles(a, nwg=256):
    a(f"s_cmp_ge_u32 s2, {nwg}"); a("s_cbranch_scc1 L_exit")
    a(f"s_load_dwordx2 s[4:5], s[0:1], {DBG}")
    a("s_getreg_b32 s6, hwreg(HW_REG_XCC_ID)")
    a("s_and_b32 s6, s6, 15")
    a("s_waitcnt lgkmcnt(0)")
    srd(a, sDB, 4, 256)
    D = f"s[{sDB}:{sDB+3}]"
    a("v_cmp_eq_u32 vcc, 0, v0")
    a("s_and_saveexec_b64 s[70:71], vcc")
    a("s_cbranch_execz T_join")
    a(f"s_cmp_lg_u32 s6, {RXCD}"); a("s_cbranch_scc1 T_work")
    a("v_mov_b32 v2, 1")
    a(f"buffer_atomic_add v2, off, {D}, 0 offset:{D_RT} sc0")
    a("s_waitcnt vmcnt(0)")
    a("v_readfirstlane_b32 s7, v2")
    a("s_cmp_lt_u32 s7, 32"); a("s_cbranch_scc1 T_pub")
    a.lab("T_work")
    a("v_mov_b32 v2, 1")
    a(f"buffer_atomic_add v2, off, {D}, 0 offset:{D_WT} sc0")
    a("s_waitcnt vmcnt(0)")
    a("v_add_u32 v2, 32, v2")
    a("v_readfirstlane_b32 s7, v2")
    a(f"s_cmp_lt_u32 s7, {nwg}"); a("s_cbranch_scc1 T_pub")
    a("v_mov_b32 v2, 1")
    a(f"buffer_atomic_add v2, off, {D}, 0 offset:{D_RT} sc0")
    a("s_waitcnt vmcnt(0)")
    a("v_cmp_gt_u32 vcc, 32, v2")
    a(f"v_mov_b32 v3, {nwg}")
    a("v_cndmask_b32 v2, v3, v2, vcc")
    a.lab("T_pub")
    a("v_mov_b32 v1, 0")
    a("ds_write_b32 v1, v2")
    a("s_waitcnt lgkmcnt(0)")
    a.lab("T_join")
    a("s_mov_b64 exec, -1")
    a("s_barrier")
    a("v_mov_b32 v1, 0")
    a("ds_read_b32 v2, v1")
    a("s_waitcnt lgkmcnt(0)")
    a(f"v_readfirstlane_b32 s{sH}, v2")
    a("s_barrier")
    a(f"s_cmp_ge_u32 s{sH}, 32"); a("s_cbranch_scc1 L_worker")
    a(f"s_cmp_eq_u32 s6, {RXCD}"); a("s_cselect_b32 s7, 1, 0x10001")

if __name__ == "__main__":
    import sys
    opts = dict(tstamp=0, d1=0, d2=0, nsteps=64, pf=2, nocomm=0, noexp=0, g1=0, g2=0, dw=0, two1=0, two2=0)
    tsl = []
    for x in sys.argv[2:]:
        k, v = x.split("=")
        if k == "tsl": tsl = [int(y) for y in v.split(",")]
        else: opts[k] = int(v)
    a = Asm()
    gen_roles(a)
    gen_R(a, tstamp=opts["tstamp"], d1=opts["d1"], d2=opts["d2"], nsteps=opts["nsteps"], pf=opts["pf"], nocomm=opts["nocomm"], noexp=opts["noexp"], g1=opts["g1"], g2=opts["g2"], dw=opts["dw"], two1=opts["two1"], two2=opts["two2"])
    a.lab("L_worker")
    a.lab("L_exit")
    a("s_endpgm")
    if tsl:
        i0 = [i for i, c in enumerate(a.L) if c.label == "R_step"][0]
        for n, pos in sorted(enumerate(tsl), key=lambda z: -z[1]):
            a.L.insert(i0 + 1 + pos, Ins(f"s_memtime s[{sTS+2*(n+1)}:{sTS+2*(n+1)+1}]"))
    body = a.finalize()
    s = "; @launch kernel=rec_kernel grid=(256,1,1) block=(256,1,1) lds=163840\n"
    s += '.amdgcn_target "amdgcn-amd-amdhsa--gfx950"\n.text\n' + kernel_header("rec_kernel") + body
    s += '.section .rodata,"a"\n' + kernel_desc("rec_kernel", 512, accum=256)
    open(sys.argv[1], "w").write(s)
```

```python
import sys, re
from asmlib import *
from layout import *
import gen_r, gen_w
from gen_w import *
NAME = "gated_mix__memory_aug_recurrent_mem_tr__moe_arch_mod__prompt"
opts = dict(d1=16, d2=12, tstamp=0, wts=0, forceg=0)
for x in sys.argv[2:]:
    k, v = x.split("="); opts[k] = int(v)
SC = " sc1"
wts = opts.pop("wts")
gen_w.DIAG = wts
a = Asm()
def stamp(slot, regs):
    a(f"s_load_dwordx2 s[92:93], s[0:1], {WS}")
    a("s_memrealtime s[94:95]")
    a("s_lshl_b32 s91, s2, 6"); a(f"s_add_u32 s91, s91, {TS + 0x100000}")
    a("s_waitcnt lgkmcnt(0)")
    a("s_add_u32 s92, s92, s91"); a("s_addc_u32 s93, s93, 0")
    a("v_mov_b32 v20, 0")
    for i, r in enumerate(regs):
        a(f"v_mov_b32 v21, s{r}")
        a(f"global_store_dword v20, v21, s[92:93] offset:{(slot + i) * 4}")
    a("s_waitcnt vmcnt(0)")
if wts:
    stamp(0, [94])
    for r in range(80, 90): a(f"s_mov_b32 s{r}, 0")
gen_r.gen_roles(a)
a("s_mov_b32 s3, 999")
gen_r.gen_R(a, sc_out=SC, sync=True, **opts)
a.lab("L_worker")
a(f"s_sub_u32 s3, s{gen_r.sH}, 33")
a(f"s_mov_b32 s{sS}, 0"); a(f"s_mov_b32 s{sSTR}, 1")
a(f"s_and_b32 s{sHD}, s3, 31")
a("s_cmp_lt_u32 s3, 32"); a("s_cbranch_scc1 W_K")
a("s_cmp_lt_u32 s3, 64"); a("s_cbranch_scc1 W_V")
a("s_cmp_lt_u32 s3, 118"); a("s_cbranch_scc1 W_B")
a("s_cmp_lt_u32 s3, 214"); a("s_cbranch_scc1 W_QA")
a("s_cmp_eq_u32 s3, -1"); a("s_cbranch_scc0 L_exit")
a("s_mov_b32 s3, 300")
a(f"s_load_dwordx2 s[28:29], s[0:1], {WS}")
lane_vars(a)
a("v_mov_b64 v[8:9], 0"); a("v_mov_b64 v[10:11], 0")
a("s_waitcnt lgkmcnt(0)")
gen_r.srd(a, qWS, 28, WS_SIZE)
for i in range(4):
    a(f"s_mov_b32 s{sT0}, {FLG + i*4096}")
    a(f"buffer_store_dwordx4 v[8:11], v4, {Q(qWS)}, s{sT0} offen sc1")
a("s_waitcnt vmcnt(0)")
a("s_barrier")
count_up(a, qDB, 0, D_INIT, 8)
a("s_waitcnt vmcnt(0)")
a("s_branch L_exit")
a.lab("W_K"); gen_P(a, True, "PK", sc=SC, sync=True)
a.lab("W_V"); gen_P(a, False, "PV", sc=SC, sync=True)
a.lab("W_QA")
a("s_sub_u32 s4, s3, 118")
a(f"s_and_b32 s{sHD}, s4, 31"); a(f"s_lshr_b32 s{sS}, s4, 5"); a(f"s_mov_b32 s{sSTR}, 3")
gen_QA(a, "QA", sc_in=SC, sc_out=SC, sync=True)
a.lab("W_B")
a(f"s_sub_u32 s{sHD}, s3, {64 + 22}")
a(f"s_cmp_ge_u32 s{sHD}, 32"); a("s_cbranch_scc1 W_B2")
gen_RG(a, "RG", sc=SC)
a("s_barrier")
count_up(a, qDB, 0, D_RG, 8)
a.lab("W_B2")
a(f"s_sub_u32 s{sHD}, s3, 64")
a(f"s_cmp_ge_u32 s{sHD}, 36"); a("s_cbranch_scc1 W_B3")
gen_FFN(a, "FF", sc_in=SC, sc_out=SC, sync=True)
a("s_barrier")
count_up(a, qDB, 0, D_FFN, 8)
a.lab("W_B3")
a(f"s_sub_u32 s{sHD}, s3, {64 + 46}")
a(f"s_cmp_ge_u32 s{sHD}, 8"); a("s_cbranch_scc1 W_WO")
wait_ge(a, qDB, 0, D_FFN, 36, 8, sleep=8)
gen_YS(a, "YS", sc_in=SC, sc_out=SC)
a("s_barrier")
count_up(a, qDB, 0, D_YS, 8)
a.lab("W_WO")
a("s_sub_u32 s5, s3, 64")
a("s_mul_i32 s4, s5, 3641"); a(f"s_lshr_b32 s{sS}, s4, 16")
a(f"s_mul_i32 s4, s{sS}, 18"); a(f"s_sub_u32 s{sHD}, s5, s4"); a(f"s_mov_b32 s{sSTR}, 3")
gen_WO(a, "WO", sc_in=SC, sync=True)
a.lab("L_exit")
if wts:
    a("s_waitcnt lgkmcnt(0)")
    stamp(1, [94, 3, 37, 80, 82, 84, 86, 88])
a("s_endpgm")
body = a.finalize()
KN = NAME + "_kernel"
hdr = open("cdna_kernels/" + NAME + ".s.ref").read().split("; Override launch")[0]
s = hdr + f"; @launch kernel={KN} grid=(256,1,1) block=(256,1,1) lds=163840\n"
s += '.amdgcn_target "amdgcn-amd-amdhsa--gfx950"\n.text\n' + kernel_header(KN) + body
s += '.section .rodata,"a"\n' + kernel_desc(KN, 512, accum=256)
open(sys.argv[1], "w").write(s)
```

```python
from asmlib import *
from layout import *
import re

class Cnt:
    def __init__(self, a, name, maxn):
        self.a = a; self.name = name; self.maxn = maxn; self.q = []
    def issue(self, tag): self.q.append(tag)
    def wait(self, tag):
        idx = max(i for i, t in enumerate(self.q) if t == tag)
        n = len(self.q) - 1 - idx
        self.a(f"s_waitcnt {self.name}({min(n, self.maxn)})")
        self.q = self.q[idx + 1:] if n <= self.maxn else self.q[-self.maxn:]
    def wait_all(self):
        self.a(f"s_waitcnt {self.name}(0)"); self.q = []

def vr(b, n): return f"v[{b}:{b+n-1}]"

def srd(a, d, lo, size):
    a(f"s_mov_b32 s{d}, s{lo}")
    a(f"s_and_b32 s{d+1}, s{lo+1}, 0xffff")
    a(f"s_mov_b32 s{d+2}, {size:#x}")
    a(f"s_mov_b32 s{d+3}, 0x20000")

vIDX, vMS, vM1, vM2, vM3, vWA0, vWA1, vXq, vXk, vXR, vXO, vJ = range(12)
F = [12, 16, 20, 24, 28, 32]
AQ0, AQ1, AK0, AK1 = 36, 40, 44, 48
ST = 52
KX0, KX1 = 68, 72
E = 76
sWS, sWQ, sWK, sWV, sWO, sM0, sDB = 8, 12, 16, 20, 24, 28, 32
sW, sH, sS, sTAG = 36, 37, 38, 39
mP, mN6, mL18, mS0, mS1, mS2, mODD = 40, 42, 44, 46, 48, 50, 52
sKV0, sKV1, sKV2, sKV3 = 54, 55, 56, 57
sKVM, sPSo, sPLo, sMOo, sMI0, sMI1, sMI2, sARM, sPF = 58, 59, 60, 61, 62, 63, 64, 65, 66
sC = 68
sT0, sT1, sT2, sT3 = 70, 71, 72, 73
sSPIN = 74
sTS = 76
mLO = 96
sONE = 98
sMOb, sMIb, sARb = 100, 101, 67
SLOT = 16384
RXCD = 3
ALF = PART + 96 * 4096
ALG = ALF + 8192
sGW, sGR = 14, 15
sAW, sAR = 12, 13
sFL, sKVP, sFR = 4, 5, 6

CH = lambda j: 16384 * (j + 1)
RES = [("q", 0), ("k", 0), ("q", 3), ("q", 6), ("k", 2), ("k", 3), ("k", 4), ("o", 1), ("o", 8)]
ALLCH = [(m, p) for m in "qkv" for p in range(9)] + [("o", t) for t in range(9)]
REGCH = [c for c in ALLCH if c not in RES]
assert len(REGCH) == 27
WREG = {}
_n = 0
for c in REGCH:
    for tau in range(2):
        if _n < 22: WREG[c + (tau,)] = ("v", 80 + 8 * _n)
        else: WREG[c + (tau,)] = ("a", 8 * (_n - 22))
        _n += 1
def wr(c, tau):
    f, b = WREG[c + (tau,)]; return f"{f}[{b}:{b+7}]"

def gen_R(a, tstamp=False, sc_out="", nsteps=64, d1=0, d2=0, pf=2, nocomm=0, noexp=0, g1=0, g2=0, dw=0, two1=0, two2=0, sync=False, forceg=0, al=0, c2=0, dm=10, NR=8, lt=0, cl=14, fj=3, pp=2, g1f=0, fpos=2):
    lg = Cnt(a, "lgkmcnt", 15); vm = Cnt(a, "vmcnt", 63)
    tsn = [0]
    def ts():
        if tstamp == 1 or (tstamp in (2, 4) and tsn[0] in (0, 6, 8)):
            a(f"s_memtime s[{sTS+2*tsn[0]}:{sTS+2*tsn[0]+1}]")
        tsn[0] += 1
    def tc(i):
        if tstamp == 2: a(f"s_memtime s[{sTS+2*i}:{sTS+2*i+1}]")
    a(f"s_load_dwordx4 s[76:79], s[0:1], {A_MEM0}")
    a(f"s_load_dwordx4 s[80:83], s[0:1], {A_WK}")
    a(f"s_load_dwordx2 s[84:85], s[0:1], {A_WO}")
    a(f"s_load_dwordx4 s[88:91], s[0:1], {DBG}")
    a("v_lshrrev_b32 v12, 6, v0")
    a("v_and_b32 v13, 63, v0")
    a(f"v_readfirstlane_b32 s{sW}, v12")
    a("v_and_b32 v14, 15, v13")
    a("v_lshrrev_b32 v15, 4, v13")
    a("s_waitcnt lgkmcnt(0)")
    srd(a, sM0, 76, 9216); srd(a, sWQ, 78, 4718592); srd(a, sWK, 80, 4718592); srd(a, sWV, 82, 4718592)
    srd(a, sWO, 84, 4718592); srd(a, sDB, 88, 256); srd(a, sWS, 90, WS_SIZE)
    L, C, G = 13, 14, 15
    a(f"v_lshlrev_b32 v{vMS}, 4, v0")
    for k, r in ((1, vM1), (2, vM2), (3, vM3)): a(f"v_xor_b32 v{r}, {k<<10:#x}, v{vMS}")
    a(f"v_and_b32 v16, 2, v{L}"); a(f"v_cmp_ne_u32 s[{mP}:{mP+1}], 0, v16")
    a(f"v_cmp_gt_u32 s[{mN6}:{mN6+1}], 6, v{C}")
    a(f"v_cmp_gt_u32 s[{mL18}:{mL18+1}], 18, v{L}")
    a(f"v_lshrrev_b32 v16, 1, v{C}")
    for k, m in enumerate((mS0, mS1, mS2)): a(f"v_cmp_eq_u32 s[{m}:{m+1}], {k}, v16")
    a(f"v_and_b32 v16, 1, v{L}"); a(f"v_cmp_ne_u32 s[{mODD}:{mODD+1}], 0, v16")
    def pv(p, lo):
        x = 0xE if p else 0x4; m = 0x5 if p else 0x4; z = 0x4
        n = [m, x, z, x] if lo else [x, z, x, m]
        return n[0] | n[1] << 4 | n[2] << 8 | n[3] << 12
    a(f"v_cmp_gt_u32 s[{mLO}:{mLO+1}], 32, v{L}")
    a(f"v_mov_b32 v16, {(pv(0,0) << 16) | 0x4444:#x}")
    a(f"v_mov_b32 v18, {(pv(1,0) << 16) | 0xEEEE:#x}"); a(f"v_mov_b32 v17, {(pv(1,1) << 16) | 0xEEEE:#x}")
    a(f"v_cndmask_b32 v18, v18, v17, s[{mLO}:{mLO+1}]")
    a(f"v_cndmask_b32 v{vIDX}, v16, v18, s[{mP}:{mP+1}]")
    R, CC = 16, 17
    a(f"v_lshrrev_b32 v{R}, 2, v{C}"); a(f"v_and_b32 v{CC}, 3, v{C}")
    a(f"v_lshrrev_b32 v18, 1, v{G}")
    a(f"v_and_b32 v19, 1, v{G}")
    a(f"v_lshrrev_b32 v20, 1, v{R}")
    a(f"v_and_b32 v21, 1, v{R}")
    a("v_lshl_or_b32 v22, v18, 4, v21")
    a("v_lshl_or_b32 v22, v19, 2, v22")
    a("v_lshl_or_b32 v22, v20, 3, v22")
    a("v_lshl_or_b32 v23, v19, 1, v21")
    a("v_lshl_or_b32 v23, v20, 2, v23")
    a(f"s_lshl_b32 s{sT0}, s{sW}, 1")
    a(f"v_xor_b32 v23, s{sT0}, v23")
    a("v_lshlrev_b32 v22, 8, v22")
    a("v_lshl_or_b32 v22, v23, 5, v22")
    a(f"v_lshl_or_b32 v22, v{CC}, 3, v22")
    a(f"v_add_u32 v{vWA0}, 0x4000, v22")
    a(f"v_xor_b32 v{vWA1}, 32, v{vWA0}")
    a(f"v_lshlrev_b32 v22, 3, v{C}")
    a("v_lshl_or_b32 v22, v19, 7, v22")
    a("v_lshlrev_b32 v23, 4, v19"); a("v_xor_b32 v22, v22, v23")
    a(f"v_lshl_or_b32 v{vXR}, v18, 10, v22")
    a("v_lshl_or_b32 v22, v18, 9, v22")
    a(f"s_lshl_b32 s{sT0}, s{sW}, 10")
    a(f"v_or_b32 v{vXO}, s{sT0}, v22")
    a(f"v_lshlrev_b32 v22, 5, v{CC}")
    a("v_lshl_or_b32 v22, v21, 8, v22")
    a("v_lshl_or_b32 v22, v20, 7, v22")
    a(f"v_or_b32 v22, s{sT0}, v22")
    a(f"v_lshl_or_b32 v{vXq}, v{G}, 3, v22")
    a("v_lshl_or_b32 v22, v18, 3, v22")
    a(f"v_lshl_or_b32 v{vXk}, v19, 4, v22")
    a("v_lshlrev_b32 v23, 4, v20")
    a(f"v_xor_b32 v{vXq}, v{vXq}, v23"); a(f"v_xor_b32 v{vXk}, v{vXk}, v23")
    a(f"s_lshl_b32 s{sT0}, s{sW}, 15"); a(f"s_lshl_b32 s{sT1}, s{sH}, 7")
    a(f"s_add_u32 s{sPSo}, s{sT0}, s{sT1}"); a(f"s_add_u32 s{sPSo}, s{sPSo}, {PART:#x}")
    a(f"s_lshl_b32 s{sT0}, s{sW}, 5"); a(f"s_add_u32 s{sT0}, s{sT0}, s{sH}"); a(f"s_lshl_b32 s{sT0}, s{sT0}, 12")
    a(f"s_lshl_b32 s{sT1}, s{sW}, 10"); a(f"s_sub_u32 s{sT0}, s{sT0}, s{sT1}")
    a(f"s_add_u32 s{sPLo}, s{sT0}, {PART:#x}")
    a(f"s_mul_i32 s{sT0}, s{sW}, 3072"); a(f"s_lshl_b32 s{sT2}, s{sH}, 5"); a(f"s_add_u32 s{sT0}, s{sT0}, s{sT2}")
    a(f"s_add_u32 s{sMOb}, s{sT0}, {MEMS:#x}")
    a(f"s_mov_b32 s{sMIb}, {MEMS + 8192:#x}")
    a(f"s_mul_i32 s{sT0}, s{sH}, 288"); a(f"s_add_u32 s{sARb}, s{sT0}, {MEMS - 3072:#x}")
    a(f"s_add_u32 s{sARM}, s{sARb}, {SLOT}")
    a(f"s_lshl_b32 s{sT0}, s{sH}, 14"); a(f"s_add_u32 s{sKV0}, s{sT0}, {KVX:#x}")
    a(f"s_add_u32 s{sKV1}, s{sKV0}, 4096"); a(f"s_add_u32 s{sKV2}, s{sKV0}, 8192"); a(f"s_add_u32 s{sKV3}, s{sKV0}, 12288")
    pass
    a(f"s_lshl_b32 s{sT0}, s{sH}, 12"); a(f"s_add_u32 s{sKVM}, s{sT0}, {KVM:#x}")
    import struct, math
    cbits = struct.unpack("<I", struct.pack("<f", (128 ** -0.5) * math.log2(math.e)))[0]
    a(f"s_mov_b32 s{sC}, {cbits:#x}"); a(f"s_mov_b32 s{sC+1}, {cbits:#x}")
    a(f"s_mov_b32 s{sSPIN}, 0")
    a("v_mov_b64 v[24:25], 0"); a("v_mov_b64 v[26:27], 0")
    a(f"s_cmp_eq_u32 s{sW}, 3"); a("s_cbranch_scc1 R_init3")
    for j in range(4): a(f"buffer_store_dwordx4 v[24:27], v{vMS}, s[{sWS}:{sWS+3}], s{sPLo} offen offset:{1024*j} sc1")
    a("s_branch R_init_done")
    a.lab("R_init3")
    a("v_mov_b64 v[24:25], -1"); a("v_mov_b64 v[26:27], -1")
    a(f"s_mov_b64 exec, s[{mL18}:{mL18+1}]")
    a(f"buffer_store_dwordx4 v[24:27], v{vMS}, s[{sWS}:{sWS+3}], s{sARM} offen sc1")
    a(f"s_add_u32 s{sARM}, s{sARM}, {SLOT}")
    a(f"buffer_store_dwordx4 v[24:27], v{vMS}, s[{sWS}:{sWS+3}], s{sARM} offen sc1")
    a(f"s_mov_b64 exec, {(1 << NR) - 1}")
    a(f"v_lshlrev_b32 v25, 7, v{L}"); a("v_mov_b32 v24, 0")
    a(f"s_lshl_b32 s{sT0}, s{sH}, 2"); a(f"s_add_u32 s{sT0}, s{sT0}, {ALF:#x}")
    a(f"buffer_store_dword v24, v25, s[{sWS}:{sWS+3}], s{sT0} offen sc1")
    a("s_mov_b64 exec, -1")
    a.lab("R_init_done")
    a(f"s_mov_b64 exec, {(1 << NR) - 1}")
    a(f"v_lshlrev_b32 v25, 3, v{vMS}"); a("v_mov_b32 v24, 0")
    a(f"s_lshl_b32 s{sT0}, s{sH}, 2"); a(f"s_add_u32 s{sT0}, s{sT0}, {ALG:#x}")
    a(f"buffer_store_dword v24, v25, s[{sWS}:{sWS+3}], s{sT0} offen sc1")
    a("s_mov_b64 exec, -1")
    a("s_waitcnt vmcnt(0)")
    a("s_barrier")
    a(f"v_cmp_eq_u32 vcc, 0, v{vMS}")
    a(f"s_and_saveexec_b64 s[{sT0}:{sT1}], vcc")
    a("s_cbranch_execz R_init_sig")
    a("v_mov_b32 v24, s7")
    a(f"buffer_atomic_add v24, off, s[{sDB}:{sDB+3}], 0 offset:{D_RDY}")
    a.lab("R_init_sig")
    a("s_mov_b64 exec, -1")
    a(f"s_lshl_b32 s{sT0}, s{sW}, 2")
    a("v_lshlrev_b32 v22, 1, v19")
    a(f"v_or_b32 v22, s{sT0}, v22")
    a(f"v_xor_b32 v22, v22, v{C}")
    a("v_lshrrev_b32 v23, 2, v22")
    a(f"v_add_u32 v24, s{sT0}, v{G}")
    a("v_lshlrev_b32 v24, 13, v24")
    a("v_lshl_or_b32 v32, v22, 4, v24")
    for k in range(4):
        a(f"v_xor_b32 v24, {k}, v23")
        a(f"v_lshl_or_b32 v{28+k}, v24, 19, v32")
    a(f"s_lshr_b32 s{sT0}, s{sW}, 1"); a(f"s_lshl_b32 s{sT0}, s{sT0}, 4")
    a(f"s_and_b32 s{sT1}, s{sW}, 1"); a(f"s_lshl_b32 s{sT1}, s{sT1}, 2"); a(f"s_add_u32 s{sT0}, s{sT0}, s{sT1}")
    a("v_bfe_u32 v24, v22, 1, 1")
    a(f"v_lshl_add_u32 v24, v24, 6, v{G}")
    a(f"v_add_u32 v24, s{sT0}, v24")
    a("v_mul_u32_u24 v24, 1152, v24")
    a("v_lshl_add_u32 v24, v23, 5, v24")
    a("v_and_b32 v25, 1, v22")
    a("v_lshl_add_u32 v33, v25, 4, v24")
    a(f"s_lshl_b32 s{sT2}, s{sH}, 8")
    a(f"s_mul_i32 s{sT3}, s{sH}, 147456")
    a(f"s_lshl_b32 s75, s{sW}, 10")
    def dma(ch, slot):
        m_, p = ch
        for m in range(4):
            a(f"s_add_u32 m0, s75, {CH(slot) + m*4096:#x}")
            if m_ == "o":
                a(f"s_add_u32 s{sT0}, s{sT3}, {(32*(m>>1) + 8*(m&1))*1152 + p*128:#x}")
                a(f"buffer_load_dwordx4 v33, s[{sWO}:{sWO+3}], s{sT0} offen lds")
            else:
                sr = {"q": sWQ, "k": sWK, "v": sWV}[m_]
                if p == 2: vo, fb = 32, 8
                elif p < 2: vo, fb = 28, 4 * p
                else: vo, fb = 28 + (p - 3) % 3 + 1, 4 * ((p - 3) // 3)
                a(f"s_add_u32 s{sT0}, s{sT2}, {fb*524288 + m*16*8192:#x}")
                a(f"buffer_load_dwordx4 v{vo}, s[{sr}:{sr+3}], s{sT0} offen lds")
    def trd(dst_f, dst_b, tau, off, tag=None, a0=vWA0, a1=vWA1):
        for jj in range(4):
            o = off + (32 * (jj >> 1) + 2 * (jj & 1)) * 256
            assert o < 65536
            a(f"ds_read_b64_tr_b16 {dst_f}[{dst_b+2*jj}:{dst_b+2*jj+1}], v{a1 if tau else a0} offset:{o}")
            if tag: lg.issue(tag)
    for gi in range(3):
        a(f"v_add_u32 v{34+2*gi}, {gi*49152:#x}, v{vWA0}"); a(f"v_add_u32 v{35+2*gi}, {gi*49152:#x}, v{vWA1}")
    order = REGCH + RES
    for gi in range(3):
        for j in range(3): dma(order[3*gi + j], 3*gi + j)
    for gi in range(9):
        a("s_waitcnt vmcnt(24)")
        a("s_barrier")
        sg = gi % 3
        for j in range(3):
            ch = order[3*gi + j]
            for tau in range(2):
                f, b = WREG[ch + (tau,)]
                trd(f, b, tau, j * 16384, a0=34 + 2*sg, a1=35 + 2*sg)
        a("s_waitcnt lgkmcnt(0)")
        a("s_barrier")
        for j in range(3): dma(order[3*(gi+3) + j], 3*sg + j)
    a("s_waitcnt vmcnt(0)")
    a("s_barrier")
    a(f"v_add_u32 v41, 0x10000, v{vMS}"); a(f"v_add_u32 v42, 0x20000, v{vMS}")
    for j in range(9):
        sg = j // 3
        for tau in range(2): trd("v", 44 + 8 * tau, tau, (j % 3) * 16384, a0=34 + 2*sg, a1=35 + 2*sg)
        a("s_waitcnt lgkmcnt(0)")
        a("s_barrier")
        for q_ in range(4):
            off = CH(j) + q_ * 4096
            a(f"ds_write_b128 v{(vMS, 41, 42)[off >> 16]}, {vr(44 + 4*q_, 4)} offset:{off & 0xffff}")
    a(f"v_mov_b32 v{vWA0}, v41"); a(f"v_mov_b32 v{vWA1}, v42")
    a("s_waitcnt lgkmcnt(0)")
    a(f"v_and_b32 v22, 1, v{C}")
    a(f"v_lshl_or_b32 v22, v{R}, 1, v22")
    a("v_mul_u32_u24 v22, 1152, v22")
    a(f"v_lshl_add_u32 v22, v{G}, 5, v22")
    a(f"v_and_b32 v23, 2, v{C}")
    a("v_lshl_add_u32 v40, v23, 3, v22")
    a(f"v_bfe_u32 v22, v{L}, 2, 1")
    a(f"v_lshl_or_b32 v22, v{G}, 1, v22")
    a("v_mul_u32_u24 v22, 1152, v22")
    a(f"v_bfe_u32 v23, v{L}, 3, 1")
    a("v_lshl_add_u32 v22, v23, 4, v22")
    a(f"v_lshl_add_u32 v43, v{CC}, 2, v22")
    a(f"s_lshl_b32 s{sT0}, s{sW}, 7"); a(f"s_lshl_b32 s{sT1}, s{sW}, 5")
    a(f"buffer_load_dwordx4 {vr(F[0],4)}, v40, s[{sM0}:{sM0+3}], s{sT0} offen")
    a(f"buffer_load_dwordx4 {vr(F[1],4)}, v40, s[{sM0}:{sM0+3}], s{sT0} offen offset:512")
    a(f"buffer_load_dword v{E+1}, v43, s[{sM0}:{sM0+3}], s{sT1} offen offset:1024")
    a.lab("R_ready")
    a(f"buffer_load_dword v42, off, s[{sDB}:{sDB+3}], 0 offset:{D_RDY} sc1")
    a(f"s_add_u32 s{sSPIN}, s{sSPIN}, 1")
    a(f"s_cmp_gt_u32 s{sSPIN}, 0x100000"); a("s_cbranch_scc1 L_exit")
    a("s_waitcnt vmcnt(0)")
    a("v_readfirstlane_b32 s7, v42")
    a(f"s_and_b32 s{sT0}, s7, 0xffff")
    a(f"s_cmp_lt_u32 s{sT0}, 32"); a("s_cbranch_scc1 R_ready")
    def kv_wait(lab, target):
        a.lab(lab)
        a(f"buffer_load_dword v{vJ}, off, s[{sWS}:{sWS+3}], s{sFL} sc1")
        a(f"s_add_u32 s{sSPIN}, s{sSPIN}, 1")
        a(f"s_cmp_gt_u32 s{sSPIN}, 0x400000"); a("s_cbranch_scc1 L_exit")
        a("s_waitcnt vmcnt(0)")
        kv_decode()
        a(f"s_cmp_lt_u32 s{sKVP}, {target}"); a(f"s_cbranch_scc1 {lab}")
    def kv_decode():
        a(f"v_readfirstlane_b32 s{sKVP}, v{vJ}")
        a(f"s_lshr_b32 s{sT1}, s{sKVP}, 16"); a(f"s_and_b32 s{sKVP}, s{sKVP}, 0xffff"); a(f"s_min_u32 s{sKVP}, s{sKVP}, s{sT1}")
    if sync:
        a.lab("R_init")
        a(f"buffer_load_dword v42, off, s[{sDB}:{sDB+3}], 0 offset:{D_INIT} sc1")
        a(f"s_add_u32 s{sSPIN}, s{sSPIN}, 1")
        a(f"s_cmp_gt_u32 s{sSPIN}, 0x100000"); a("s_cbranch_scc1 L_exit")
        a("s_waitcnt vmcnt(0)")
        a(f"v_readfirstlane_b32 s{sT0}, v42")
        a(f"s_cmp_lt_u32 s{sT0}, 1"); a("s_cbranch_scc1 R_init")
        a(f"s_lshl_b32 s{sFL}, s{sH}, 7"); a(f"s_add_u32 s{sFL}, s{sFL}, {FLG:#x}")
        a(f"s_add_u32 s{sFR}, s{sFL}, 4096")
        kv_wait("R_kv0", 2)
    a("s_barrier")
    a("v_mov_b64 v[40:41], 0"); a("v_mov_b64 v[42:43], 0")
    a(f"ds_write_b128 v{vMS}, v[40:43] offset:8192")
    a(f"s_mov_b32 s{sONE}, 0x3f803f80"); a(f"s_mov_b32 s{sONE+1}, 0x3f803f80")
    def WL(dst, ch, tau, tag=None):
        j = RES.index(ch); out = []
        for hf in range(2):
            off = CH(j) + tau * 8192 + hf * 4096
            out.append(I(f"ds_read_b128 {vr(dst+4*hf,4)}, v{(vMS, vWA0, vWA1)[off >> 16]} offset:{off & 0xffff}", lg if tag else None, tag))
        return out
    def I(text, cnt=None, tag=None):
        def f():
            a(text)
            if cnt is not None: cnt.issue(tag)
        return f
    def run(*items):
        for it in items:
            if isinstance(it, (list, tuple)): run(*it)
            else: it()
    def preload(): run(WL(ST, ("q", 0), 0), WL(ST + 8, ("q", 0), 1))
    def preload2(): run(WL(F[2], ("k", 0), 0), WL(F[4], ("k", 0), 1))
    preload(); preload2()
    for r in range(AQ0, AQ0 + 16, 2): a(f"v_mov_b64 {vr(r,2)}, 0")
    a(f"s_mov_b32 s{sS}, 0"); a(f"s_mov_b32 s{sTAG}, 1")
    a(f"v_mov_b32 v{vJ}, 0")
    a(f"s_lshl_b32 s{sGW}, s{sH}, 2"); a(f"s_add_u32 s{sGW}, s{sGW}, {ALG:#x}")
    a(f"s_lshr_b32 s{sGR}, s{sH}, 3"); a(f"s_lshl_b32 s{sGR}, s{sGR}, 13")
    a(f"s_and_b32 s{sT0}, s{sH}, {NR - 1}"); a(f"s_lshl_b32 s{sT0}, s{sT0}, 7"); a(f"s_add_u32 s{sGR}, s{sGR}, s{sT0}")
    a(f"s_lshl_b32 s{sT0}, s{sW}, 8"); a(f"s_sub_u32 s{sGR}, s{sGR}, s{sT0}"); a(f"s_add_u32 s{sGR}, s{sGR}, {ALG:#x}")
    if al:
        a(f"s_lshl_b32 s{sAW}, s{sH}, 2"); a(f"s_add_u32 s{sAW}, s{sAW}, {ALF - (3072 if al == 1 else 2048) * 8:#x}")
        a(f"s_and_b32 s{sAR}, s{sH}, {NR - 1}"); a(f"s_lshl_b32 s{sAR}, s{sAR}, 7"); a(f"s_add_u32 s{sAR}, s{sAR}, {ALF - 768:#x}")
    else:
        a(f"s_lshl_b32 s{sAW}, s{sH}, 2"); a(f"s_add_u32 s{sAW}, s{sAW}, {ALF:#x}")
        a(f"s_lshl_b32 s{sAR}, s{sW}, 8"); a(f"s_sub_u32 s{sAR}, {ALF:#x}, s{sAR}")
    for r in list(range(F[0], F[0] + 8)) + [E + 1]: a(f"v_min_u32 v{r}, -2, v{r}")
    a(f"v_and_b32 v{E}, 0x3ff, v{vMS}"); a(f"v_lshrrev_b32 v{E+2}, 2, v{vMS}")
    a("s_waitcnt lgkmcnt(0)")

    WSR = f"s[{sWS}:{sWS+3}]"
    def kx_issue():
        a(f"buffer_load_dwordx4 {vr(KX0,4)}, v{vMS}, {WSR}, s{sKV0} offen{sc_out}")
        a(f"buffer_load_dwordx4 {vr(KX1,4)}, v{vMS}, {WSR}, s{sKV1} offen{sc_out}")
    kx_issue()
    def smf(acc, A, B, pvidx=False):
        a(f"v_smfmac_f32_16x16x64_bf16 {vr(acc,4)}, {vr(A,4)}, {B}, v{vIDX}" + (" abid:1" if pvidx else ""))
    FR = {0: F[0], 1: F[1], 2: E, 3: F[2], 4: F[3], 5: F[4], 6: F[5], 7: F[0], 8: F[1]}
    S0, S1 = vr(ST, 8), vr(ST + 8, 8)
    ACC = {"q": (AQ0, AQ1), "k": (AK0, AK1), "v": (AQ0, AQ1)}
    def M(m, pos, tau, B=None):
        if B is None: B = wr((m, pos), tau)
        return lambda: smf(ACC[m][tau], FR[pos], B)
    def LW(tag): return lambda: lg.wait(tag)
    def VW(tag): return lambda: vm.wait(tag)
    def add2(r): return [I(f"v_add_f32 v{r}, v{r}, v{r+2}"), I(f"v_add_f32 v{r+1}, v{r+1}, v{r+3}")]
    def pkadd(r): a(f"v_pk_add_f32 {vr(r,2)}, {vr(r,2)}, {vr(r+2,2)}")
    def PK(r): return lambda: pkadd(r)
    def cvt(d, x, y): return I(f"v_cvt_pk_bf16_f32 v{d}, v{x}, " + (f"v{y}" if y is not None else "0"))
    def z2(r): return I(f"v_mov_b64 {vr(r,2)}, 0")
    def rdf(pos):
        k = (pos - 3) % 3; off = 4096 * ((pos - 3) // 3)
        return I(f"ds_read_b128 {vr(FR[pos],4)}, v{(vM1,vM2,vM3)[k]} offset:{off}", lg, f"f{pos}")
    def sel(d, x, y): return I(f"v_cndmask_b32_dpp v{d}, v{x}, v{y}, vcc quad_perm:[2,3,2,3] row_mask:0xf bank_mask:0xf")
    BAR = I("s_barrier")
    TS_ = lambda: ts()

    if tstamp == 3:
        a("s_memtime s[76:77]"); a("s_memrealtime s[80:81]"); a("s_waitcnt lgkmcnt(0)")
    a(f"s_cmp_gt_u32 s7, {0xffff if not forceg else 0}"); a("s_cbranch_scc1 G_step")
    loop0 = len(a.L)
    a(".p2align 6")
    a.lab("R_step")
    ts()
    a0, a1 = WL(ST, ("q", 3), 0, "a0"), WL(ST + 8, ("q", 3), 1, "a1")
    b0, b1 = WL(ST, ("q", 6), 0, "b0"), WL(ST + 8, ("q", 6), 1, "b1")
    c0, c1 = WL(ST, ("k", 2), 0, "c0"), WL(ST + 8, ("k", 3), 0, "c1")
    d0, d1_ = WL(ST, ("k", 4), 0, "d0"), WL(ST + 8, ("k", 2), 1, "d1")
    e0, e1 = WL(ST, ("k", 3), 1, "e0"), WL(ST + 8, ("k", 4), 1, "e1")
    aq0, aq1, ak0, ak1 = add2(AQ0), add2(AQ1), add2(AK0), add2(AK1)
    sl = [sel(KX1 + r, AQ1 + r, KX0 + r) for r in range(4)]
    NX = 32 * 16384
    def PF(sreg, ar):
        if not pf: return [[], []]
        return [I(f"v_lshlrev_b32 v{ar}, 1, v{vMS}"),
                [I(f"s_add_u32 s{sT0}, s{sreg}, {NX:#x}"), I(f"buffer_load_dword v{vJ}, v{ar}, {WSR}, s{sT0} offen", vm, "pf")]]
    def sig(val, vt):
        a(f"v_mov_b32 v{vt}, {val}")
        a("s_mov_b64 exec, 1")
        a(f"buffer_store_dword v{vt}, off, {WSR}, s{sFR} sc1")
        a("s_mov_b64 exec, -1")
    B1 = F[2]
    vm.q = ["l0", "l1", "l2", "kx", "kx"]
    CK = E + 3
    pK, pV = PF(sKV0, vJ), PF(sKV2, B1 + 1)
    run(VW("l0"), lambda: tc(7),
        M("q", 0, 0, S0), I(f"ds_write_b128 v{vMS}, {vr(F[0],4)}", lg, "w"),
        M("q", 0, 1, S1), VW("l1"), I(f"v_max3_u32 v{CK}, v{F[0]}, v{F[0]+1}, v{F[0]+2}"),
        M("k", 0, 0, vr(F[2], 8)), I(f"ds_write_b128 v{vMS}, {vr(F[1],4)} offset:4096", lg, "w"), VW("l2"),
            I(f"ds_write_b32 v{E+2}, v{E+1} offset:12288", lg, "w"),
        M("k", 0, 1, vr(F[4], 8)), a0[0], I(f"v_max3_u32 v{CK}, v{CK}, v{F[0]+3}, v{F[1]}"), I(f"v_max3_u32 v{CK}, v{CK}, v{F[1]+1}, v{F[1]+2}"),
        M("q", 1, 0), a0[1], I(f"v_max3_u32 v{CK}, v{CK}, v{F[1]+3}, v{E+1}"), I(f"v_cmp_eq_u32 vcc, -1, v{CK}"),
        M("q", 1, 1), a1[0], a1[1],
        LW("w"), I("s_cbranch_vccnz R_fix"), BAR,
        rdf(3),
        M("k", 1, 0), rdf(4),
        M("k", 1, 1), I(f"ds_read_b128 {vr(E,4)}, v{E} offset:12288", lg, "f2"), rdf(5),
        I(f"s_mov_b64 vcc, s[{mP}:{mP+1}]"), pK[0],
        LW("f3"),
        M("q", 3, 0, S0), rdf(7),
        M("q", 3, 1, S1), rdf(8), LW("f4"),
        M("q", 4, 0), rdf(6),
        M("q", 4, 1), b0[0], LW("f2"),
        M("q", 2, 0), b0[1],
        M("q", 2, 1), b1[0], LW("f5"),
        M("q", 5, 0), b1[1],
        M("q", 5, 1), BAR, LW("f8"),
        M("q", 7, 0), pK[1],
        M("q", 8, 0), LW("b0"),
        M("q", 6, 0, S0), c0[0], LW("b1"),
        M("q", 6, 1, S1), c0[1],
        M("q", 7, 1), c1[0],
        M("q", 8, 1), c1[1], TS_, aq0[0],
        M("k", 5, 0), aq0[1],
        M("k", 6, 0), LW("c0"), cvt(AQ0 + 2, AQ0, AQ0 + 1),
        M("k", 2, 0, S0), d0[0], aq1[0], LW("c1"),
        M("k", 3, 0, S1), d0[1], aq1[1],
        M("k", 7, 0), I(f"ds_write_b32 v{vXq}, v{AQ0+2} offset:{8192+4}", lg, "w"), cvt(AQ0 + 3, AQ1, AQ1 + 1),
        M("k", 8, 0), I(f"ds_write_b32 v{vXq}, v{AQ0+3} offset:{8192+4+512}", lg, "w"),
            I(f"ds_read_b64_tr_b16 {vr(AQ0,2)}, v{vXO} offset:8192", lg, "xo"),
        M("k", 5, 1), I(f"ds_read_b64_tr_b16 {vr(AQ0+2,2)}, v{vXO} offset:{8192+256}", lg, "xo"), LW("d0"),
        M("k", 4, 0, S0), d1_[0],
        M("k", 6, 1), d1_[1],
        M("k", 7, 1), e0[0], VW("kx"),
        M("k", 8, 1), e0[1], LW("xo"),
        I(f"v_mfma_f32_16x16x32_bf16 {vr(AQ1,4)}, {vr(KX0,4)}, {vr(AQ0,4)}, 0"), LW("d1"), ak0[0], ak0[1],
        M("k", 2, 1, S1), e1[0], cvt(AK0 + 1, AK0, AK0 + 1),
        I(f"v_mfma_f32_16x16x32_bf16 {vr(KX0,4)}, {vr(KX1,4)}, {vr(AQ0,4)}, 0"), e1[1], z2(AQ0), LW("e0"),
        M("k", 3, 1, S0), I(f"ds_write_b32 v{vXk}, v{AK0+1} offset:8192", lg, "w"), z2(AQ0 + 2),
        I("s_nop 1"),
        M("v", 3, 0), I("s_nop 0"), sl[0],
        M("v", 4, 0), sl[1], LW("e1"),
        M("k", 4, 1, S1), TS_, sl[2], sl[3],
        M("v", 5, 0), I(f"ds_write_b128 v{vMS}, {vr(KX1,4)} offset:12288", lg, "w"),
        z2(AQ1), z2(AQ1 + 2),
        ak1, cvt(AK1 + 3, AK1, AK1 + 1),
        M("v", 3, 1), I(f"ds_write_b32 v{vXk}, v{AK1+3} offset:{8192+512}", lg, "w"),
        M("v", 4, 1), I(f"buffer_load_dwordx4 {vr(AK0+2,4)}, v{vMS}, {WSR}, s{sKV2} offen{sc_out}", vm, "vx"),
        M("v", 5, 1), pV[0],
        M("v", 6, 0),
        M("v", 6, 1), I(f"buffer_load_dwordx4 {vr(B1+2,4)}, v{vMS}, {WSR}, s{sKV3} offen{sc_out}", vm, "vx"),
        LW("w"), BAR)
    xr = [I(f"ds_read_b64_tr_b16 {vr(ST+4*ks+2*x,2)}, v{vXR} offset:{8192 + (ks&1)*2048 + (ks>>1)*512 + x*256}", lg, f"x{ks}")
          for ks in range(4) for x in range(2)]
    SMD = F[0]
    def SM(ks): return I(f"v_mfma_f32_16x16x32_bf16 {vr(SMD,4)}, {vr(ST+4*ks,4)}, {vr(ST+4*ks,4)}, {vr(SMD,4) if ks else 0}")
    def addq(d, x): return [I(f"v_add_f32 v{d+r}, v{d+r}, v{x+r}") for r in range(4)]
    m_, sm_, t_ = SMD + 3, SMD + 2, SMD
    p1, p2, p3 = addq(KX1, KX0), addq(KX1, F[4]), addq(KX1, F[5])
    wA = WL(ST, ("o", 1), 0, "woA") + WL(ST + 8, ("o", 1), 1, "woA")
    def MV(pos, tau, A): return lambda: smf(ACC["v"][tau], A, wr(("v", pos), tau))
    OA0, OA1 = F[4], F[5]
    LO = f"s[{mLO}:{mLO+1}]"
    run(xr[0], xr[1],
        M("v", 7, 0), I(f"ds_read_b128 {vr(KX0,4)}, v{vM1} offset:12288", lg, "p1"), xr[2],
        M("v", 7, 1), xr[3], I(f"ds_read_b128 {vr(F[4],4)}, v{vM2} offset:12288", lg, "p2"),
        M("v", 8, 0), xr[4], xr[5],
        M("v", 8, 1), I(f"ds_read_b128 {vr(F[5],4)}, v{vM3} offset:12288", lg, "p3"), LW("p1"),
        SM(0), xr[6], xr[7], LW("x1"),
        SM(1), I(f"ds_read_b128 {vr(F[1],4)}, v{vMS} offset:4096", lg, "o1"), p1[0], p1[1], LW("x2"),
        SM(2), p1[2], p1[3],
        M("v", 2, 0), I(f"ds_read_b128 {vr(KX0,4)}, v{vMS}", lg, "o0"), p2[0], LW("x3"),
        SM(3), TS_, p2[1], p2[2],
        M("v", 2, 1), pV[1], p2[3],
        p3,
        sel(sm_, SMD, SMD + 1),
        I(f"v_max3_f32 v{m_}, v{KX1}, v{KX1+1}, v{KX1+2}"),
        I(f"v_max3_f32 v{m_}, v{m_}, v{KX1+3}, v{sm_}"), LW("o0"),
        MV(1, 0, F[1]), wA[0],
        I(f"v_max_f32_dpp v{m_}, v{m_}, v{m_} quad_perm:[2,3,0,1] row_mask:0xf bank_mask:0xf"),
        I(f"v_mov_b32 v{t_}, v{m_}"),
        MV(0, 0, KX0), wA[1],
        I(f"v_permlane16_swap_b32 v{t_}, v{m_}"),
        I(f"v_max_f32 v{m_}, v{t_}, v{m_}"),
        I(f"v_mov_b32 v{t_}, v{m_}"),
        MV(1, 1, F[1]), wA[2],
        I(f"v_permlane32_swap_b32 v{t_}, v{m_}"),
        I(f"v_max_f32 v{m_}, v{t_}, v{m_}"),
        MV(0, 1, KX0), wA[3],
        I(f"v_mul_f32 v{t_}, s{sC}, v{m_}"),
        I(f"v_fma_f32 v{sm_}, v{sm_}, s{sC}, -v{t_}"),
        [I(f"v_fma_f32 v{KX1+r}, v{KX1+r}, s{sC}, -v{t_}") for r in range(4)],
        I(f"v_exp_f32 v{sm_}, v{sm_}"),
        [I(f"v_exp_f32 v{KX1+r}, v{KX1+r}") for r in range(4)],
        cvt(sm_, sm_, None),
        cvt(KX1, KX1, KX1 + 1), cvt(KX1 + 2, KX1 + 2, KX1 + 3),
        I(f"v_cndmask_b32 v{E}, v{KX1}, v{sm_}, {LO}"),
        I(f"v_cndmask_b32 v{E+1}, 0, v{KX1}, {LO}"),
        I(f"v_cndmask_b32 v{E+2}, v{KX1+2}, 0, {LO}"),
        I(f"v_cndmask_b32 v{E+3}, v{sm_}, v{KX1+2}, {LO}"),
        I(f"v_mov_b64 {vr(KX0,2)}, s[{sONE}:{sONE+1}]"), I(f"v_mov_b64 {vr(KX0+2,2)}, s[{sONE}:{sONE+1}]"),
        PK(AQ0), PK(AQ1),
        I(f"v_mfma_f32_16x16x32_bf16 {vr(KX1,4)}, {vr(E,4)}, {vr(KX0,4)}, 0"), VW("vx"),
        z2(OA0), z2(OA0 + 2),
        cvt(AK0, AQ0, AQ0 + 1), cvt(AK1 + 2, AQ0, AQ0 + 1),
        z2(OA1), z2(OA1 + 2),
        lambda: smf(OA0, E, vr(AK0, 8), True),
        I(f"s_cmp_eq_u32 s{sS}, {nsteps-1}"),
        cvt(B1, AQ1, AQ1 + 1), cvt(B1 + 6, AQ1, AQ1 + 1),
        add2(KX1),
        lambda: smf(OA1, E, vr(B1, 8), True),
        I("s_cbranch_scc1 R_done"),
        TS_)
    VST = [I(f"v_mov_b32 v{AK0+2}, v{AK1+3}"), I(f"v_mov_b32 v{AK0+3}, v{B1}"),
           I(f"buffer_store_dwordx4 {vr(AK0,4)}, v{vMS}, {WSR}, s{sKVM} offen{sc_out}", vm, "st")]
    if noexp: VST = []
    wC = WL(ST, ("o", 8), 0, "woC") + WL(ST + 8, ("o", 8), 1, "woC")
    accs = [F[0], F[1], AQ0, AQ1, KX0, F[4], F[5], AK0, AK1]
    run(I(f"v_rcp_f32 v{KX1}, v{KX1}"), I(f"v_rcp_f32 v{KX1+1}, v{KX1+1}"),
        PK(OA0),
        I(f"v_pk_mul_f32 {vr(OA0,2)}, {vr(OA0,2)}, {vr(KX1,2)}"),
        cvt(KX1 + 2, OA0, OA0 + 1),
        PK(OA1),
        I(f"v_pk_mul_f32 {vr(OA1,2)}, {vr(OA1,2)}, {vr(KX1,2)}"),
        cvt(KX1 + 3, OA1, OA1 + 1),
        I(f"ds_write_b64 v{vXq}, {vr(KX1+2,2)}", lg, "w"),
        VST, z2(F[0]), z2(F[0] + 2), z2(F[1]), z2(F[1] + 2),
        LW("w"), BAR,
        [I(f"ds_read_b64_tr_b16 {vr(F[2]+4*ks+2*x,2)}, v{vXR} offset:{ks*2048 + x*256}", lg, f"a{ks}") for ks in range(2) for x in range(2)],
        z2(AQ0), z2(AQ0 + 2), z2(AQ1), z2(AQ1 + 2), z2(KX0), z2(KX0 + 2), z2(F[4]))
    ts()
    A0, A1 = F[2], F[3]
    def WB(t, ks):
        if t in (1, 8): return (S0, S1)[ks]
        return wr(("o", t), ks)
    def O(t, ks): return lambda: smf(accs[t], (A0, A1)[ks], WB(t, ks))
    def fin(t):
        r = accs[t]; return add2(r) + [cvt(E + t % 3, r, r + 1)]
    def pst(T):
        return I(f"buffer_store_dwordx4 {vr(E,4)}, v{KX1+2}, {WSR}, s{(sPSo, sT0, sT1)[T]} offen ; HO", vm, "ps")
    f = [fin(t) for t in range(9)]
    def SYNC():
        if not sync: return
        a(f"s_cmp_lg_u32 s{sW}, 3"); a("s_cbranch_scc1 R_ns")
        sig(f"s{sS}", KX1)
        a.lab("R_ns")
        a(f"s_cmp_eq_u32 s{sKVP}, 64"); a("s_cbranch_scc1 R_nk")
        a(f"buffer_load_dword v{vJ}, off, {WSR}, s{sFL} sc1")
        a.lab("R_nk")
    GA = I(f"v_lshlrev_b32 v{KX1+1}, 3, v{vMS}") if g1f else []
    def GF(pos):
        if not g1f or pos != fpos: return []
        return [I(f"s_mov_b64 exec, {(1 << NR) - 1}"), I(f"buffer_store_dword v{E+3}, v{KX1+1}, {WSR}, s{sGW} offen ; HO"), I("s_mov_b64 exec, -1")]
    run(LW("a0"), O(0, 0), I(f"s_add_u32 s{sT0}, s{sPSo}, {32*4096:#x}"), z2(F[4] + 2), GA,
        O(1, 0), wC[0], z2(F[5]), LW("a1"),
        O(0, 1), wC[1], z2(F[5] + 2),
        O(1, 1), wC[2], z2(AK1),
        O(2, 0), wC[3], z2(AK1 + 2),
        O(2, 1), SYNC, I(f"s_add_u32 s{sT1}, s{sPSo}, {64*4096:#x}"), I(f"v_and_b32 v{KX1+2}, 0x70, v{vMS}"), f[0][0],
        O(3, 0), f[0][1], I(f"v_and_b32 v{KX1+3}, 0x380, v{vMS}"),
        O(3, 1), f[0][2], f[1][0],
        O(4, 0), f[1][1], f[2][0], I(f"v_lshl_or_b32 v{KX1+2}, v{KX1+3}, 5, v{KX1+2}"),
        O(4, 1), f[1][2], f[2][1], I(f"v_mov_b32 v{E+3}, s{sTAG}"),
        O(5, 0), f[2][2], f[3][0],
        O(5, 1), pst(0), f[3][1],
        O(6, 0), f[4][0], f[3][2], z2(AK0),
        O(6, 1), z2(AK0 + 2), f[4][1], f[4][2],
        O(7, 0), GF(0), f[5][0], f[5][1],
        O(7, 1), LW("woC"), f[5][2], f[6][0],
        O(8, 0), pst(1), f[6][1],
        O(8, 1), GF(1), f[7][0], f[7][1], f[6][2], f[7][2],
        PK(accs[8]), f[8][2], pst(2), GF(2))
    ts()
    if al == 1 and not nocomm:
        a(f"s_cmp_lg_u32 s{sW}, 3"); a("s_cbranch_scc1 R_nf")
        a(f"v_lshlrev_b32 v{KX1}, 3, v{vMS}")
        a(f"s_mov_b64 exec, {(1 << NR) - 1}")
        a(f"buffer_store_dword v{E+3}, v{KX1}, {WSR}, s{sAW} offen ; HO")
        a("s_mov_b64 exec, -1")
        a.lab("R_nf")
    preload()
    a(f"s_and_b32 s{sT0}, s{sTAG}, 3"); a(f"s_lshl_b32 s{sT0}, s{sT0}, 14")
    a(f"s_add_u32 s{sMOo}, s{sMOb}, s{sT0}"); a(f"s_add_u32 s{sMI2}, s{sMIb}, s{sT0}")
    a(f"s_add_u32 s{sMI0}, s{sT0}, {MEMS:#x}"); a(f"s_add_u32 s{sMI1}, s{sT0}, {MEMS + 4096:#x}")
    a(f"s_xor_b32 s{sT0}, s{sT0}, 0x8000"); a(f"s_add_u32 s{sARM}, s{sARb}, s{sT0}")
    if tstamp in (1, 2, 4):
        a(f"s_memrealtime s[{sTS+18}:{sTS+19}]")
        a(f"s_lshl_b32 s{sT0}, s{sH}, 2"); a(f"s_add_u32 s{sT0}, s{sT0}, s{sW}"); a(f"s_lshl_b32 s{sT0}, s{sT0}, 6")
        a(f"s_add_u32 s{sT0}, s{sT0}, s{sS}"); a(f"s_lshl_b32 s{sT0}, s{sT0}, 6"); a(f"s_add_u32 s{sT0}, s{sT0}, {TS:#x}")
        a(f"v_bfe_u32 v{F[1]+1}, v{vMS}, 2, 8")
        a("s_waitcnt lgkmcnt(0)")
        for i in range(9): a(f"v_writelane_b32 v{F[1]}, s{sTS+2*i}, {i}")
        a(f"v_writelane_b32 v{F[1]}, s{sTS+18}, 14")
        a(f"v_writelane_b32 v{F[1]}, s{sSPIN}, 15")
        a("s_mov_b64 exec, 0xffff")
        a(f"buffer_store_dword v{F[1]}, v{F[1]+1}, {WSR}, s{sT0} offen")
        a("s_mov_b64 exec, -1")
    if nocomm:
        preload2(); a("s_branch R_h2")
    a(f"s_cmp_eq_u32 s{sW}, 3"); a("s_cbranch_scc1 R_w3")
    if lt:
        vm.wait("lt")
        a(f"v_cmp_eq_u32 vcc, s{sTAG}, v{KX1}")
        a(f"s_bitcmp1_b32 vcc_lo, s{sH}"); a(f"s_cselect_b32 s{sT2}, 0, vcc_lo")
    a(f"v_mov_b32 v{KX1}, 0x3f80"); a(f"v_mov_b32 v{KX1+1}, 0x3f800000")
    a(f"v_cndmask_b32 v{KX1}, v{KX1}, v{KX1+1}, s[{mODD}:{mODD+1}]")
    for k, m in enumerate((mS0, mS1, mS2)): a(f"v_cndmask_b32 v{KX0+k}, 0, v{KX1}, s[{m}:{m+1}]")
    a(f"v_mov_b32 v{KX0+3}, 0")
    a(f"v_and_b32 v{F[0]}, 0x10, v{vMS}")
    a(f"v_and_b32 v{F[0]+1}, 0xe0, v{vMS}")
    a(f"v_lshl_or_b32 v{F[0]}, v{F[0]+1}, 5, v{F[0]}")
    a(f"v_bfe_u32 v{F[0]+1}, v{vMS}, 8, 1")
    a(f"v_lshl_or_b32 v{F[0]}, v{F[0]+1}, 3, v{F[0]}")
    a(f"v_bfe_u32 v{F[0]+1}, v{vMS}, 9, 1")
    a(f"v_lshl_or_b32 v{F[0]}, v{F[0]+1}, 2, v{F[0]}")
    def gap(n):
        for _ in range(n):
            a(f"v_mov_b32 v{F[0]+2}, 0"); a("s_nop 2")
    def p1_issue(R_):
        for j in range(4): a(f"buffer_load_dwordx4 {vr(R_+4*j,4)}, v{vMS}, {WSR}, s{sPLo} offen offset:{1024*j} sc1")
    def p1_check(R_, fail, younger, flag=None):
        for j in range(4):
            a(f"s_waitcnt vmcnt({3-j+younger+(1 if flag is not None and j > flag else 0)})")
            if j == 0: tc(2)
            if j == 3: tc(3)
            a(f"v_cmp_ne_u32 vcc, s{sTAG}, v{R_+4*j+3}")
            a(f"v_mfma_f32_16x16x32_bf16 {vr(KX1,4)}, {vr(R_+4*j,4)}, {vr(KX0,4)}, {vr(KX1,4) if j else 0}")
            a(f"s_cbranch_vccnz {fail}")
            if flag == j:
                a(f"s_mov_b64 exec, {(1 << NR) - 1}")
                a(f"buffer_store_dword v{E+3}, v{F[0]+3}, {WSR}, s{sAW} offen ; HO")
                a("s_mov_b64 exec, -1")
    def spin():
        a(f"s_add_u32 s{sSPIN}, s{sSPIN}, 1")
        a(f"s_cmp_gt_u32 s{sSPIN}, 0x400000"); a("s_cbranch_scc1 L_exit")
    def mark_late(val, vt):
        if not lt: return
        a(f"v_mov_b32 v{vt}, {val}")
        a("s_mov_b64 exec, 1")
        a(f"buffer_store_dword v{vt}, off, {WSR}, s{sAW} ; HO")
        a("s_mov_b64 exec, -1")
    if not two1: preload2()
    gap(d1)
    if lt:
        a(f"s_cmp_eq_u32 s{sT2}, 0"); a("s_cbranch_scc1 R_p1n")
        gap(cl)
        a.lab("R_p1n")
    if dw:
        a(f"s_cmp_eq_u32 s{sW}, 0"); a("s_cbranch_scc1 R_p1")
        gap(dw)
        a(f"s_cmp_eq_u32 s{sW}, 1"); a("s_cbranch_scc1 R_p1")
        gap(dw)
    if g1f:
        a(f"v_lshrrev_b32 v{F[1]+2}, 2, v{vMS}")
        a(f"v_mov_b32 v{F[1]+3}, 0")
        a(f"s_mov_b64 exec, s[{mLO}:{mLO+1}]")
        a.lab("R_g1")
        for _ in range(12):
            a(f"buffer_load_dword v{F[1]+3}, v{F[1]+2}, {WSR}, s{sGR} offen sc1")
            if pp: a(f"s_nop {pp}")
            a("s_waitcnt vmcnt(10)")
            a(f"v_cmp_ne_u32 vcc, s{sTAG}, v{F[1]+3}")
            a("s_cbranch_vccz R_g1x")
        spin()
        a("s_branch R_g1")
        a.lab("R_g1x")
        a("s_mov_b64 exec, -1")
    a.lab("R_p1")
    tc(1)
    if two1:
        p1_issue(AQ0)
        gap(g1)
        a("s_branch R_p1a")
        a.lab("R_p1b")
        p1_issue(AQ0)
        spin()
        p1_check(F[2], "R_p1a", 4)
        a("s_branch R_p1ok")
        a.lab("R_p1a")
        p1_issue(F[2])
        spin()
        p1_check(AQ0, "R_p1b", 4)
        a.lab("R_p1ok")
        a("s_nop 6")
    else:
        p1_issue(AQ0)
        a.lab("R_p1c")
        if al == 2:
            a(f"v_lshlrev_b32 v{F[0]+3}, 3, v{vMS}")
            a(f"s_cmp_eq_u32 s{sW}, 2"); a("s_cbranch_scc1 R_p1f")
            p1_check(AQ0, "R_p1r", 0)
            a("s_nop 2")
            a("s_branch R_p1g")
            a.lab("R_p1f")
            p1_check(AQ0, "R_p1r", 0, fj)
            if fj != 3: a("s_nop 3")
            a.lab("R_p1g")
            a("s_nop 2")
        else:
            p1_check(AQ0, "R_p1r", 0)
    a(f"v_permlane32_swap_b32 v{KX1}, v{KX1+2}")
    a(f"v_permlane32_swap_b32 v{KX1+1}, v{KX1+3}")
    pkadd(KX1)
    a(f"v_cvt_pk_bf16_f32 v{KX1}, v{KX1}, v{KX1+1}")
    a(f"s_mov_b64 exec, s[{mN6}:{mN6+1}]")
    a(f"v_min_u32 v{KX1}, -2, v{KX1}")
    a(f"buffer_store_dword v{KX1}, v{F[0]}, {WSR}, s{sMOo} offen ; HO")
    a("s_mov_b64 exec, -1")
    if al: tc(4); gap(dm)
    a("s_branch R_h2")
    if not two1:
        a.lab("R_p1r")
        tc(1)
        a(f"s_add_u32 s{sT2}, s{sTAG}, 1")
        mark_late(f"s{sT2}", F[0] + 3)
        p1_issue(AQ0)
        spin()
        a("s_branch R_p1c")
    a.lab("R_w3")
    if not two1: preload2()
    a(f"v_mov_b64 {vr(KX0,2)}, -1"); a(f"v_mov_b64 {vr(KX0+2,2)}, -1")
    a(f"s_mov_b64 exec, s[{mL18}:{mL18+1}]")
    a(f"buffer_store_dwordx4 {vr(KX0,4)}, v{vMS}, {WSR}, s{sARM} offen ; HO")
    a("s_mov_b64 exec, -1")
    if al == 1:
        a(f"v_lshrrev_b32 v{KX1}, 2, v{vMS}")
        a(f"s_mov_b64 exec, s[{mLO}:{mLO+1}]")
        probe = f"buffer_load_dword v{KX1+1}, v{KX1}, {WSR}, s{sAR} offen sc1"
        a(f"v_mov_b32 v{KX1+1}, 0")
        a.lab("R_al")
        a(probe)
        spin()
        a("s_waitcnt vmcnt(12)")
        a(f"v_cmp_ne_u32 vcc, s{sTAG}, v{KX1+1}")
        a("s_cbranch_vccnz R_al")
        a("s_mov_b64 exec, -1")
        tc(4)
        gap(c2)
        a("s_waitcnt vmcnt(0)")
    elif al == 2:
        a(f"v_lshrrev_b32 v{KX1}, 2, v{vMS}")
        a(f"v_mov_b32 v{KX1+1}, 0")
        gap(c2)
        a(f"s_mov_b64 exec, s[{mLO}:{mLO+1}]")
        a.lab("R_al")
        for _ in range(12):
            a(f"buffer_load_dword v{KX1+1}, v{KX1}, {WSR}, s{sAR} offen sc1")
            if pp: a(f"s_nop {pp}")
            a("s_waitcnt vmcnt(10)")
            a(f"v_cmp_ne_u32 vcc, s{sTAG}, v{KX1+1}")
            a("s_cbranch_vccz R_alx")
        spin()
        a("s_branch R_al")
        a.lab("R_alx")
        a("s_mov_b64 exec, -1")
        tc(4)
    else:
        a("s_waitcnt vmcnt(1)")
    a.lab("R_h2")
    ts()
    if not al: tc(4)
    a("s_barrier")
    for r in (sKV0, sKV1, sKV2, sKV3): a(f"s_add_u32 s{r}, s{r}, {32*16384:#x}")
    a(f"s_add_u32 s{sKVM}, s{sKVM}, {32*4096:#x}")
    a(f"s_add_u32 s{sS}, s{sS}, 1"); a(f"s_add_u32 s{sTAG}, s{sTAG}, 1")
    def gap2(n):
        for _ in range(n):
            a(f"v_mov_b32 v{E+3}, 0"); a("s_nop 2")
    def p2_issue():
        a(f"buffer_load_dwordx4 {vr(F[0],4)}, v{vMS}, {WSR}, s{sMI0} offen sc1")
        a(f"buffer_load_dwordx4 {vr(F[1],4)}, v{vMS}, {WSR}, s{sMI1} offen sc1")
        a(f"buffer_load_dword v{E+1}, v{E+2}, {WSR}, s{sMI2} offen sc1")
    a(f"v_and_b32 v{E}, 0x3ff, v{vMS}"); a(f"v_lshrrev_b32 v{E+2}, 2, v{vMS}")
    if sync:
        a(f"s_cmp_eq_u32 s{sKVP}, 64"); a("s_cbranch_scc1 R_kvok")
        kv_decode()
        a(f"s_add_u32 s{sT0}, s{sS}, 2"); a(f"s_min_u32 s{sT0}, s{sT0}, 64")
        a(f"s_cmp_ge_u32 s{sKVP}, s{sT0}"); a("s_cbranch_scc1 R_kvok")
        kv_wait("R_kv1", f"s{sT0}")
        a.lab("R_kvok")
    if two1:
        a("s_waitcnt vmcnt(1)")
        preload2()
    gap2(d2)
    tc(5)
    if nocomm:
        a("s_waitcnt vmcnt(0)")
        for r in list(range(F[0], F[0] + 8)) + [E + 1]: a(f"v_mov_b32 v{r}, 0")
    else: p2_issue()
    for r in range(AQ0, AQ0 + 16, 2): a(f"v_mov_b64 {vr(r,2)}, 0")
    gap2(g2)
    kx_issue()
    ts()
    a("s_waitcnt lgkmcnt(0)")
    a("s_branch R_step")
    a.lab("R_fix")
    mark_late(f"s{sTAG}", KX0)
    p2_issue()
    a("s_waitcnt lgkmcnt(0)")
    preload()
    for r in range(AK0, AK0 + 8, 2): a(f"v_mov_b64 {vr(r,2)}, 0")
    for r in range(AQ0, AQ0 + 8, 2): a(f"v_mov_b64 {vr(r,2)}, 0")
    kx_issue()
    spin()
    a("s_waitcnt lgkmcnt(0)")
    a("s_branch R_step")
    a.lab("R_done")
    run(VST)
    if tstamp == 3:
        a("s_memtime s[78:79]"); a("s_memrealtime s[82:83]"); a("s_waitcnt lgkmcnt(0)")
        a("s_sub_u32 s78, s78, s76"); a("s_sub_u32 s82, s82, s80")
        a(f"v_mov_b32 v{F[0]}, s78"); a(f"v_mov_b32 v{F[0]+1}, s82"); a(f"v_mov_b32 v{F[0]+2}, s{sSPIN}"); a(f"v_mov_b32 v{F[0]+3}, 0")
        a(f"s_lshl_b32 s{sT0}, s{sH}, 12"); a(f"s_add_u32 s{sT0}, s{sT0}, {TS:#x}")
        a(f"buffer_store_dwordx4 {vr(F[0],4)}, v{vMS}, {WSR}, s{sT0} offen")
    a("s_waitcnt vmcnt(0)")
    if sync:
        a("s_barrier")
        a(f"s_cmp_lg_u32 s{sW}, 3"); a("s_cbranch_scc1 L_exit")
        sig(64, KX1)
        a("s_waitcnt vmcnt(0)")
    a("s_branch L_exit")
    for c in list(a.L[loop0:]):
        a.L.append(Ins(re.sub(r"\bR_", "G_", c.text).replace(" ; HO", " sc1")))

def gen_roles(a, nwg=256):
    a(f"s_cmp_ge_u32 s2, {nwg}"); a("s_cbranch_scc1 L_exit")
    a(f"s_load_dwordx2 s[4:5], s[0:1], {DBG}")
    a("s_getreg_b32 s6, hwreg(HW_REG_XCC_ID)")
    a("s_and_b32 s6, s6, 15")
    a("s_waitcnt lgkmcnt(0)")
    srd(a, sDB, 4, 256)
    D = f"s[{sDB}:{sDB+3}]"
    a("v_cmp_eq_u32 vcc, 0, v0")
    a("s_and_saveexec_b64 s[70:71], vcc")
    a("s_cbranch_execz T_join")
    a(f"s_cmp_lg_u32 s6, {RXCD}"); a("s_cbranch_scc1 T_work")
    a("v_mov_b32 v2, 1")
    a(f"buffer_atomic_add v2, off, {D}, 0 offset:{D_RT} sc0")
    a("s_waitcnt vmcnt(0)")
    a("v_readfirstlane_b32 s7, v2")
    a("s_cmp_lt_u32 s7, 32"); a("s_cbranch_scc1 T_pub")
    a.lab("T_work")
    a("v_mov_b32 v2, 1")
    a(f"buffer_atomic_add v2, off, {D}, 0 offset:{D_WT} sc0")
    a("s_waitcnt vmcnt(0)")
    a("v_add_u32 v2, 32, v2")
    a("v_readfirstlane_b32 s7, v2")
    a(f"s_cmp_lt_u32 s7, {nwg}"); a("s_cbranch_scc1 T_pub")
    a("v_mov_b32 v2, 1")
    a(f"buffer_atomic_add v2, off, {D}, 0 offset:{D_RT} sc0")
    a("s_waitcnt vmcnt(0)")
    a("v_cmp_gt_u32 vcc, 32, v2")
    a(f"v_mov_b32 v3, {nwg}")
    a("v_cndmask_b32 v2, v3, v2, vcc")
    a.lab("T_pub")
    a("v_mov_b32 v1, 0")
    a("ds_write_b32 v1, v2")
    a("s_waitcnt lgkmcnt(0)")
    a.lab("T_join")
    a("s_mov_b64 exec, -1")
    a("s_barrier")
    a("v_mov_b32 v1, 0")
    a("ds_read_b32 v2, v1")
    a("s_waitcnt lgkmcnt(0)")
    a(f"v_readfirstlane_b32 s{sH}, v2")
    a("s_barrier")
    a(f"s_cmp_ge_u32 s{sH}, 32"); a("s_cbranch_scc1 L_worker")
    a(f"s_cmp_eq_u32 s6, {RXCD}"); a("s_cselect_b32 s7, 1, 0x10001")

if __name__ == "__main__":
    import sys
    opts = dict(tstamp=0, d1=0, d2=0, nsteps=64, pf=2, nocomm=0, noexp=0, g1=0, g2=0, dw=0, two1=0, two2=0, al=0, c2=0, dm=10, NR=8, lt=0, cl=14, fj=3, pp=2, g1f=0, fpos=2)
    tsl = []
    for x in sys.argv[2:]:
        k, v = x.split("=")
        if k == "tsl": tsl = [int(y) for y in v.split(",")]
        else: opts[k] = int(v)
    RXCD = opts.pop("rx", 3)
    a = Asm()
    gen_roles(a)
    gen_R(a, tstamp=opts["tstamp"], d1=opts["d1"], d2=opts["d2"], nsteps=opts["nsteps"], pf=opts["pf"], nocomm=opts["nocomm"], noexp=opts["noexp"], g1=opts["g1"], g2=opts["g2"], dw=opts["dw"], two1=opts["two1"], two2=opts["two2"], al=opts["al"], c2=opts["c2"], dm=opts["dm"], NR=opts["NR"], lt=opts["lt"], cl=opts["cl"], fj=opts["fj"], pp=opts["pp"], g1f=opts["g1f"], fpos=opts["fpos"])
    a.lab("L_worker")
    a.lab("L_exit")
    a("s_endpgm")
    if tsl:
        i0 = [i for i, c in enumerate(a.L) if c.label == "R_step"][0]
        for n, pos in sorted(enumerate(tsl), key=lambda z: -z[1]):
            a.L.insert(i0 + 1 + pos, Ins(f"s_memtime s[{sTS+2*(n+1)}:{sTS+2*(n+1)+1}]"))
    body = a.finalize()
    s = "; @launch kernel=rec_kernel grid=(256,1,1) block=(256,1,1) lds=163840\n"
    s += '.amdgcn_target "amdgcn-amd-amdhsa--gfx950"\n.text\n' + kernel_header("rec_kernel") + body
    s += '.section .rodata,"a"\n' + kernel_desc("rec_kernel", 512, accum=256)
    open(sys.argv[1], "w").write(s)
```

```python
import sys, re
from asmlib import *
from layout import *
import gen_r, gen_w
from gen_w import *
NAME = "gated_mix__memory_aug_recurrent_mem_tr__moe_arch_mod__prompt"
opts = dict(d1=16, d2=12, g2=5, tstamp=0, wts=0, forceg=0)
for x in sys.argv[2:]:
    k, v = x.split("="); opts[k] = int(v)
SC = " sc1"
wts = opts.pop("wts")
gen_w.DIAG = wts
a = Asm()
def stamp(slot, regs):
    a(f"s_load_dwordx2 s[92:93], s[0:1], {WS}")
    a("s_memrealtime s[94:95]")
    a("s_lshl_b32 s91, s2, 6"); a(f"s_add_u32 s91, s91, {TS + 0x100000}")
    a("s_waitcnt lgkmcnt(0)")
    a("s_add_u32 s92, s92, s91"); a("s_addc_u32 s93, s93, 0")
    a("v_mov_b32 v20, 0")
    for i, r in enumerate(regs):
        a(f"v_mov_b32 v21, s{r}")
        a(f"global_store_dword v20, v21, s[92:93] offset:{(slot + i) * 4}")
    a("s_waitcnt vmcnt(0)")
if wts:
    stamp(0, [94])
    for r in range(80, 90): a(f"s_mov_b32 s{r}, 0")
gen_r.gen_roles(a)
a("s_mov_b32 s3, 999")
gen_r.gen_R(a, sc_out=SC, sync=True, **opts)
a.lab("L_worker")
a(f"s_sub_u32 s3, s{gen_r.sH}, 33")
a(f"s_mov_b32 s{sS}, 0"); a(f"s_mov_b32 s{sSTR}, 1")
a(f"s_and_b32 s{sHD}, s3, 31")
a("s_cmp_lt_u32 s3, 32"); a("s_cbranch_scc1 W_K")
a("s_cmp_lt_u32 s3, 64"); a("s_cbranch_scc1 W_V")
a("s_cmp_lt_u32 s3, 118"); a("s_cbranch_scc1 W_B")
a("s_cmp_lt_u32 s3, 214"); a("s_cbranch_scc1 W_QA")
a("s_cmp_eq_u32 s3, -1"); a("s_cbranch_scc0 L_exit")
a("s_mov_b32 s3, 300")
a(f"s_load_dwordx2 s[28:29], s[0:1], {WS}")
lane_vars(a)
a("v_mov_b64 v[8:9], 0"); a("v_mov_b64 v[10:11], 0")
a("s_waitcnt lgkmcnt(0)")
gen_r.srd(a, qWS, 28, WS_SIZE)
for i in range(4):
    a(f"s_mov_b32 s{sT0}, {FLG + i*4096}")
    a(f"buffer_store_dwordx4 v[8:11], v4, {Q(qWS)}, s{sT0} offen sc1")
a("s_waitcnt vmcnt(0)")
a("s_barrier")
count_up(a, qDB, 0, D_INIT, 8)
a("s_waitcnt vmcnt(0)")
a("s_branch L_exit")
a.lab("W_K"); gen_P(a, True, "PK", sc=SC, sync=True)
a.lab("W_V"); gen_P(a, False, "PV", sc=SC, sync=True)
a.lab("W_QA")
a("s_sub_u32 s4, s3, 118")
a(f"s_and_b32 s{sHD}, s4, 31"); a(f"s_lshr_b32 s{sS}, s4, 5"); a(f"s_mov_b32 s{sSTR}, 3")
gen_QA(a, "QA", sc_in=SC, sc_out=SC, sync=True)
a.lab("W_B")
a(f"s_sub_u32 s{sHD}, s3, {64 + 22}")
a(f"s_cmp_ge_u32 s{sHD}, 32"); a("s_cbranch_scc1 W_B2")
gen_RG(a, "RG", sc=SC)
a("s_barrier")
count_up(a, qDB, 0, D_RG, 8)
a.lab("W_B2")
a(f"s_sub_u32 s{sHD}, s3, 64")
a(f"s_cmp_ge_u32 s{sHD}, 36"); a("s_cbranch_scc1 W_B3")
gen_FFN(a, "FF", sc_in=SC, sc_out=SC, sync=True)
a("s_barrier")
count_up(a, qDB, 0, D_FFN, 8)
a.lab("W_B3")
a(f"s_sub_u32 s{sHD}, s3, {64 + 46}")
a(f"s_cmp_ge_u32 s{sHD}, 8"); a("s_cbranch_scc1 W_WO")
wait_ge(a, qDB, 0, D_FFN, 36, 8, sleep=8)
gen_YS(a, "YS", sc_in=SC, sc_out=SC)
a("s_barrier")
count_up(a, qDB, 0, D_YS, 8)
a.lab("W_WO")
a("s_sub_u32 s5, s3, 64")
a("s_mul_i32 s4, s5, 3641"); a(f"s_lshr_b32 s{sS}, s4, 16")
a(f"s_mul_i32 s4, s{sS}, 18"); a(f"s_sub_u32 s{sHD}, s5, s4"); a(f"s_mov_b32 s{sSTR}, 3")
gen_WO(a, "WO", sc_in=SC, sync=True)
a.lab("L_exit")
if wts:
    a("s_waitcnt lgkmcnt(0)")
    stamp(1, [94, 3, 37, 80, 82, 84, 86, 88])
a("s_endpgm")
body = a.finalize()
KN = NAME + "_kernel"
hdr = open("cdna_kernels/" + NAME + ".s.ref").read().split("; Override launch")[0]
s = hdr + f"; @launch kernel={KN} grid=(256,1,1) block=(256,1,1) lds=163840\n"
s += '.amdgcn_target "amdgcn-amd-amdhsa--gfx950"\n.text\n' + kernel_header(KN) + body
s += '.section .rodata,"a"\n' + kernel_desc(KN, 512, accum=256)
open(sys.argv[1], "w").write(s)
```
